```python
import torch

def _softmax(x, axis=-1):
    return torch.softmax(x, dim=axis)

def _gelu(x):
    return torch.nn.functional.gelu(x, approximate='tanh')

def _silu(x):
    return torch.nn.functional.silu(x)

def _sigmoid(x):
    return torch.sigmoid(x)

def _layernorm(x, axis=-1, eps=1e-05):
    m = x.mean(dim=axis, keepdim=True)
    v = x.var(dim=axis, keepdim=True, unbiased=False)
    return (x - m) / torch.sqrt(v + eps)

def _scatter_add(tgt, idx, src, axis=0):
    return tgt.clone().index_add_(axis, idx, src)

def _segment_sum(src, seg, n):
    out = torch.zeros((n,) + src.shape[1:], dtype=src.dtype)
    return out.index_add_(0, seg, src)

def _pad(x, pw):
    flat = tuple((v for pair in reversed(pw) for v in pair))
    return torch.nn.functional.pad(x, flat)
kernel_name = 'adaLN_cond__spectral_gfnet__mixer_channel_mlp__prompt'

def setup_inputs():

    _w = lambda a: (lambda t: t.to(torch.bfloat16) if t.is_floating_point() else t)(torch.as_tensor(a))

    def _A_setup():
        B, S, D = (1, 2048, 1024)
        Df = D // 2 + 1
        return {'x': _w((lambda *s: torch.randn(*s, dtype=torch.bfloat16) * 0.05)(B, S, D)), 'w_r': _w((lambda *s: torch.randn(*s, dtype=torch.bfloat16) * 1.6)(S, Df) * 0.02), 'w_i': _w((lambda *s: torch.randn(*s, dtype=torch.bfloat16) * 1.6)(S, Df) * 0.02)}
    _A_in = _A_setup()

    def _B_setup():
        B, S, D, F = (1, 2048, 1024, 3584)
        return {'x': _w((lambda *s: torch.randn(*s, dtype=torch.bfloat16) * 0.05)(B, S, D)), 'w1': _w((lambda *s: torch.randn(*s, dtype=torch.bfloat16) * 3.2)(D, F) * D ** (-0.5)), 'b1': _w((lambda *s: torch.randn(*s, dtype=torch.bfloat16) * 0.8)(F)), 'w2': _w((lambda *s: torch.randn(*s, dtype=torch.bfloat16) * 0.05)(F, D) * F ** (-0.5)), 'b2': _w((lambda *s: torch.randn(*s, dtype=torch.bfloat16) * 0.1)(D))}
    _B_in = _B_setup()
    return {'A_x': _A_in['x'], 'A_w_r': _A_in['w_r'], 'A_w_i': _A_in['w_i'], 'B_x': _B_in['x'], 'B_w1': _B_in['w1'], 'B_b1': _B_in['b1'], 'B_w2': _B_in['w2'], 'B_b2': _B_in['b2'], 'c': _w((lambda *s: torch.randn(*s, dtype=torch.bfloat16) * 0.2)(1, 1024) * 8.0), 'w_mod': _w((lambda *s: torch.randn(*s, dtype=torch.bfloat16) * 0.2)(1024, 6 * 1024) * 1024 ** (-0.5) * 8.0)}

def reference(A_x, A_w_r, A_w_i, B_x, B_w1, B_b1, B_w2, B_b2, c, w_mod):

    def _A_ref(x, w_r, w_i):
        B, S, D = x.shape
        X = (lambda x, axes=(-2, -1): torch.fft.rfft2(x.float(), dim=axes))(x, axes=(-2, -1))
        W = w_r + 1j * w_i
        X = X * W
        y = (lambda x, s, axes=(-2, -1): torch.fft.irfft2(x, s=s, dim=axes).to(torch.bfloat16))(X, (S, D), axes=(-2, -1))
        return y

    def _B_ref(x, w1, b1, w2, b2):
        y = _layernorm(x, axis=-1)
        h = _gelu(torch.einsum('bsd,df->bsf', y, w1) + b1)
        return torch.einsum('bsf,fd->bsd', h, w2) + b2
    x = A_x
    mod = (_silu(c) @ w_mod).reshape(c.shape[0], 6, 1, -1)
    sa, ca, ga, sb, cb, gb = (mod[:, 0].clone(), mod[:, 1].clone(), mod[:, 2].clone(), mod[:, 3].clone(), mod[:, 4].clone(), mod[:, 5].clone())
    h = _layernorm(x, axis=-1) * (1 + ca) + sa
    x = x + ga * _A_ref(h, A_w_r, A_w_i)
    h = _layernorm(x, axis=-1) * (1 + cb) + sb
    x = x + gb * _B_ref(h, B_w1, B_b1, B_w2, B_b2)
    return x
```

```python
import re
import struct


def v(i, n=1):
    return f"v{i}" if n == 1 else f"v[{i}:{i + n - 1}]"


def a(i, n=1):
    return f"a{i}" if n == 1 else f"a[{i}:{i + n - 1}]"


def s(i, n=1):
    return f"s{i}" if n == 1 else f"s[{i}:{i + n - 1}]"


def f32hex(x):
    return "0x%08x" % struct.unpack("<I", struct.pack("<f", x))[0]


def bf16bits(x):
    u = struct.unpack("<I", struct.pack("<f", x))[0]
    u = (u + 0x7FFF + ((u >> 16) & 1)) >> 16
    return u & 0xFFFF


_REG_RE = re.compile(r"\b([vas])(\d+)\b|\b([vas])\[(\d+):(\d+)\]|\b(vcc|exec|m0|scc)(_lo|_hi)?\b")

TRANS = ("v_exp_f32", "v_log_f32", "v_rcp_f32", "v_rsq_f32", "v_sqrt_f32", "v_sin_f32", "v_cos_f32",
         "v_rcp_iflag_f32")


def regs_of(tok):
    out = set()
    for m in _REG_RE.finditer(tok):
        if m.group(1):
            out.add((m.group(1), int(m.group(2))))
        elif m.group(3):
            for i in range(int(m.group(4)), int(m.group(5)) + 1):
                out.add((m.group(3), i))
        else:
            out.add((m.group(6), 0))
    return out


def split_ops(rest):
    ops, depth, cur = [], 0, ""
    for ch in rest:
        if ch in "[(":
            depth += 1
        if ch in "])":
            depth -= 1
        if ch == "," and depth == 0:
            ops.append(cur.strip())
            cur = ""
        else:
            cur += ch
    if cur.strip():
        ops.append(cur.strip())
    return ops


class Ins:
    __slots__ = ("text", "op", "cls", "rd", "wr", "srcc", "srcab", "passes", "dpp", "ws", "target", "store_data",
                 "lds_dma", "sreads")

    def __init__(self, text):
        self.text = text
        t = text.split(";")[0].strip()
        parts = t.split(None, 1)
        op = parts[0]
        rest = parts[1] if len(parts) > 1 else ""
        self.op = op
        ops = split_ops(rest)
        if ops:
            last = ops[-1].split()
            mods = " ".join(last[1:])
            ops[-1] = last[0] if last else ""
        else:
            mods = ""
        self.rd, self.wr = set(), set()
        self.srcc, self.srcab = set(), set()
        self.passes = 0
        self.dpp = False
        self.ws = 1
        self.target = None
        self.store_data = set()
        self.lds_dma = False
        base = op.replace("_e32", "").replace("_e64", "").replace("_dpp", "").replace("_sdwa", "")
        if op.startswith("v_mfma"):
            self.cls = "mfma"
            self.wr = regs_of(ops[0])
            self.srcab = regs_of(ops[1]) | regs_of(ops[2])
            self.srcc = regs_of(ops[3])
            self.rd = self.srcab | self.srcc
            if "32x32x16" in op or "32x32x8" in op:
                self.passes = 8
            elif "16x16x32" in op or "16x16x16" in op:
                self.passes = 4
            else:
                raise ValueError("unknown mfma " + op)
        elif op.startswith("v_"):
            self.cls = "valu"
            self.dpp = "_dpp" in op or "quad_perm" in mods or "row_" in mods
            if base.startswith("v_permlane") and "swap" in base:
                self.wr = regs_of(ops[0]) | regs_of(ops[1])
                self.rd = set(self.wr)
            elif base.startswith("v_cmp"):
                self.wr = regs_of(ops[0])
                for o in ops[1:]:
                    self.rd |= regs_of(o)
                if base.startswith("v_cmpx"):
                    self.wr.add(("exec", 0))
            elif base in ("v_add_co_u32", "v_sub_co_u32", "v_addc_co_u32", "v_subb_co_u32", "v_subrev_co_u32",
                          "v_mad_u64_u32", "v_div_scale_f32"):
                self.wr = regs_of(ops[0]) | regs_of(ops[1])
                for o in ops[2:]:
                    self.rd |= regs_of(o)
            else:
                self.wr = regs_of(ops[0])
                for o in ops[1:]:
                    self.rd |= regs_of(o)
                if base in ("v_fmac_f32", "v_dot2c_f32_bf16", "v_pk_fmac_f16", "v_writelane_b32") or self.dpp \
                        or "dst_unused:UNUSED_PRESERVE" in mods:
                    self.rd |= self.wr
                if base == "v_cndmask_b32" and len(ops) == 3:
                    self.rd.add(("vcc", 0))
        elif op.startswith("buffer_") or op.startswith("global_") or op.startswith("flat_"):
            self.cls = "vmem"
            allmods = mods + " " + (ops[-1] if ops else "")
            is_lds = bool(re.search(r"\blds\b", mods)) or "load_lds" in op
            self.lds_dma = is_lds
            if op in ("buffer_wbl2", "buffer_inv"):
                pass
            elif "load" in op and not is_lds:
                self.wr = regs_of(ops[0])
                for o in ops[1:]:
                    self.rd |= regs_of(o)
                if "d16" in op:
                    self.rd |= self.wr
            elif is_lds:
                for o in ops:
                    self.rd |= regs_of(o)
                self.rd.add(("m0", 0))
            elif "store" in op:
                for o in ops:
                    self.rd |= regs_of(o)
                data = ops[0] if op.startswith("buffer_") else ops[1]
                if "x3" in op or "x4" in op:
                    self.store_data = regs_of(data)
            elif "atomic" in op:
                for o in ops:
                    self.rd |= regs_of(o)
                if re.search(r"\bsc0\b", mods):
                    self.wr = regs_of(ops[0])
            else:
                raise ValueError("unknown vmem " + text)
        elif op.startswith("ds_"):
            self.cls = "ds"
            if "read" in op or "bpermute" in op or "permute" in op or "swizzle" in op or "_rtn" in op:
                self.wr = regs_of(ops[0])
                for o in ops[1:]:
                    self.rd |= regs_of(o)
            else:
                for o in ops:
                    self.rd |= regs_of(o)
        elif op == "s_nop":
            self.cls = "nop"
            self.ws = int(ops[0], 0) + 1
        elif op.startswith("s_cbranch") or op == "s_branch":
            self.cls = "branch"
            self.target = ops[0]
        elif op in ("s_waitcnt", "s_barrier", "s_endpgm", "s_setprio", "s_sleep"):
            self.cls = "misc"
        elif op.startswith("s_load") or op.startswith("s_buffer_load") or op in ("s_memtime", "s_memrealtime") \
                or op.startswith("s_atomic"):
            self.cls = "smem"
            self.wr = regs_of(ops[0])
            for o in ops[1:]:
                self.rd |= regs_of(o)
        elif op.startswith("s_"):
            self.cls = "salu"
            if op.startswith("s_cmp") or op.startswith("s_bitcmp"):
                for o in ops:
                    self.rd |= regs_of(o)
            else:
                self.wr = regs_of(ops[0])
                for o in ops[1:]:
                    self.rd |= regs_of(o)
                if "saveexec" in op:
                    self.wr.add(("exec", 0))
        else:
            raise ValueError("unknown instruction " + text)
        self.sreads = {r for r in self.rd if r[0] in ("s", "vcc")}


def _vec(rs):
    return {r for r in rs if r[0] in ("v", "a")}


def _sc(rs):
    return {r for r in rs if r[0] in ("s", "vcc")}


def need_between(p, c):
    n = 0
    base_c = c.op.replace("_e32", "").replace("_e64", "")
    if p.cls == "valu":
        if c.cls == "mfma" and p.op.startswith("v_pk_") and ("op_sel" in p.text or "neg_" in p.text):
            n = max(n, 2)
        wv = _vec(p.wr)
        ws_ = _sc(p.wr)
        if wv:
            if c.cls == "mfma" and wv & c.rd:
                n = max(n, 2)
            if c.cls == "valu":
                if c.dpp and wv & c.rd:
                    n = max(n, 2)
                if base_c.startswith("v_permlane") and wv & c.rd:
                    n = max(n, 2)
                if base_c in ("v_readlane_b32", "v_readfirstlane_b32") and wv & c.rd:
                    n = max(n, 1)
                pb = p.op.replace("_e32", "").replace("_e64", "")
                if pb in TRANS and wv & c.rd:
                    n = max(n, 1)
                if ("dst_sel:WORD" in p.text or "dst_sel:BYTE" in p.text) and wv & (c.rd | c.wr):
                    n = max(n, 1)
                if pb.startswith("v_dot2") and wv & (c.rd | c.wr):
                    cb = base_c
                    if cb != pb:
                        n = max(n, 3)
                    else:
                        ops = split_ops(c.text.split(";")[0].split(None, 1)[1])
                        ab = set()
                        for o in ops[1:3]:
                            ab |= regs_of(o)
                        if wv & ab:
                            n = max(n, 3)
            if c.cls in ("vmem", "ds") and p.op.startswith("v_dot2") and wv & c.rd:
                n = max(n, 3)
        if ws_:
            if c.cls == "valu" and ws_ & c.rd:
                n = max(n, 2)
                if base_c in ("v_readlane_b32", "v_writelane_b32"):
                    n = max(n, 4)
            if c.cls == "mfma" and ws_ & c.rd:
                n = max(n, 2)
            if c.cls == "vmem" and ws_ & c.rd:
                n = max(n, 5)
            if c.cls in ("salu", "smem") and ws_ & c.rd:
                n = max(n, 1)
            if c.cls == "branch" and ("vcc", 0) in ws_ and "vcc" in c.op:
                n = max(n, 5)
        if ("exec", 0) in p.wr:
            if c.cls in ("valu", "mfma"):
                n = max(n, 5)
    elif p.cls == "mfma":
        big = {4: 8, 8: 12}[p.passes]
        ovl = {4: 6, 8: 10}[p.passes]
        war = {4: 3, 8: 7}[p.passes]
        if c.cls == "mfma":
            if p.wr & c.srcab:
                n = max(n, big)
            if p.wr & c.srcc:
                if not (p.wr == c.srcc and p.passes == c.passes):
                    n = max(n, ovl)
            elif p.wr & c.wr:
                n = max(n, ovl)
        elif c.cls in ("valu", "vmem", "ds"):
            if p.wr & (c.rd | c.wr):
                n = max(n, big)
            if c.cls == "valu" and p.srcc & c.wr:
                n = max(n, war)
            if c.cls in ("vmem", "ds") and p.srcc & c.wr:
                n = max(n, war)
    elif p.cls == "vmem":
        if p.store_data and (p.store_data & c.wr):
            n = max(n, 2 if c.cls == "valu" else 1)
    elif p.cls == "salu":
        if ("m0", 0) in p.wr and (c.lds_dma or "addtid" in c.op or c.op.startswith("s_movrel")):
            n = max(n, 1)
    return n


MAXWIN = 14


class Kernel:
    def __init__(self, name):
        self.name = name
        self.items = []
        self._uid = 0

    def __call__(self, text):
        for line in text.split("\n"):
            line = line.strip()
            if not line:
                continue
            if line.startswith(";"):
                self.items.append(("r", "    " + line))
            else:
                self.items.append(("i", Ins(line)))

    def label(self, name):
        self.items.append(("l", name))

    def newlabel(self, stem="L"):
        self._uid += 1
        return f"{self.name}_{stem}{self._uid}"

    STAMPS = False
    STAMP_BASE = 0x4000000

    def stamp(self, i, cyc=False):
        if not Kernel.STAMPS:
            return
        self(f"{'s_memtime' if cyc else 's_memrealtime'} s[{70+2*i}:{71+2*i}]")
        self("s_waitcnt lgkmcnt(0)")
        self.nstamps = max(getattr(self, "nstamps", 0), i + 1)

    def stamp_flush(self, kidx, srd=20):
        if not Kernel.STAMPS:
            return
        n = self.nstamps
        self("s_mov_b64 exec, 1")
        self(f"s_lshl_b32 s98, s2, 3")
        self(f"s_add_u32 s98, s98, s3")
        self(f"s_lshl_b32 s98, s98, 6")
        self(f"s_add_u32 s98, s98, {Kernel.STAMP_BASE + kidx * 2048 * 8 * 64}")
        self(f"s_mov_b32 s{srd+2}, 0x10000000")
        self("v_mov_b32 v0, 0")
        for i in range(n):
            self(f"v_mov_b32 v1, s{70+2*i}")
            self(f"buffer_store_dword v1, v0, s[{srd}:{srd+3}], s98 offen offset:{4*i}")

    def raw(self, text):
        self.items.append(("r", text))

    def finish(self):
        items = self.items
        i = 0
        n_ins = 0
        while i < len(items):
            kind, it = items[i]
            if kind != "i" or it.cls in ("nop", "misc"):
                i += 1
                continue
            need = self._need(items, i)
            if need > 0:
                while need > 0:
                    k = min(need, 16)
                    items.insert(i, ("i", Ins(f"s_nop {k - 1}")))
                    i += 1
                    need -= k
                    n_ins += 1
            i += 1
        out = []
        for kind, it in items:
            if kind == "i":
                out.append("    " + it.text)
            elif kind == "l":
                out.append(it + ":")
            else:
                out.append(it)
        self.n_nops = n_ins
        return "\n".join(out) + "\n"

    def _need(self, items, idx):
        c = items[idx][1]
        if not hasattr(self, "_br") or self._brlen != len(items):
            self._br = {}
            for j, (k, it) in enumerate(items):
                if k == "i" and it.cls == "branch":
                    self._br.setdefault(it.target, []).append(j)
            self._brlen = len(items)
        best = 0
        stack = [(idx - 1, 0)]
        seen = set()
        while stack:
            j, dist = stack.pop()
            while j >= 0 and dist < MAXWIN:
                if (j, dist) in seen:
                    break
                seen.add((j, dist))
                k, it = items[j]
                if k == "l":
                    for b in self._br.get(it, []):
                        stack.append((b, dist))
                    j -= 1
                    continue
                if k == "r":
                    j -= 1
                    continue
                if it.op in ("s_branch", "s_endpgm") and j != idx - 1 + 1 and not self._arrived_by_branch(j, stack):
                    pass
                n = need_between(it, c)
                if n > dist:
                    best = max(best, n - dist)
                dist += it.ws
                pj = j - 1
                while pj >= 0 and items[pj][0] == "r":
                    pj -= 1
                if pj >= 0 and items[pj][0] == "i" and items[pj][1].op in ("s_branch", "s_endpgm"):
                    break
                j -= 1
        return best

    def _arrived_by_branch(self, j, stack):
        return False


def descriptor(name, vgprs, sgprs=102, accum=None, agprs=0, wg_y=False):
    accum = accum if accum is not None else ((vgprs + 3) // 4) * 4
    accum = max(4, min(256, accum))
    nfv = accum + agprs if agprs else vgprs
    t = f""".section .rodata,"a"
.p2align 6
.amdhsa_kernel {name}
  .amdhsa_next_free_vgpr {nfv}
  .amdhsa_next_free_sgpr {sgprs}
  .amdhsa_accum_offset {accum}
  .amdhsa_group_segment_fixed_size 0
  .amdhsa_kernarg_size 104
  .amdhsa_user_sgpr_count 2
  .amdhsa_user_sgpr_kernarg_segment_ptr 1
  .amdhsa_system_sgpr_workgroup_id_x 1
"""
    if wg_y:
        t += "  .amdhsa_system_sgpr_workgroup_id_y 1\n"
    t += "  .amdhsa_float_denorm_mode_32 3\n"
    t += ".end_amdhsa_kernel\n"
    return t


def kernel_text(k):
    body = k.finish()
    return f""".text
.globl {k.name}
.p2align 8
.type {k.name},@function
{k.name}:
{body}"""


def max_regs(k):
    mv = ms = ma = -1
    for kind, it in k.items:
        if kind != "i":
            continue
        for r in it.rd | it.wr:
            if r[0] == "v":
                mv = max(mv, r[1])
            elif r[0] == "s":
                ms = max(ms, r[1])
            elif r[0] == "a":
                ma = max(ma, r[1])
    return mv + 1, ms + 1, ma + 1
```

```python
from asmlib import *
from layout import *

LOG2E = 1.4426950408889634

def srd(k, dst, ptr, nbytes):
    k(f"s_mov_b32 s{dst}, s{ptr}")
    k(f"s_mov_b32 s{dst+1}, s{ptr+1}")
    k(f"s_mov_b32 s{dst+2}, {nbytes}")
    k(f"s_mov_b32 s{dst+3}, 0x20000")

def round_bf16(k, dst, src):
    k(f"v_cvt_pk_bf16_f32 v{dst}, v{src}, v{src}")
    k(f"v_and_b32 v{dst}, 0xffff0000, v{dst}")

K0_NA, K0_NB, K0_NC = 768, 256, 288
K0_NWG = K0_NA + K0_NB + K0_NC

def gen_k0():
    k = Kernel("k0_kernel")
    LB, LC, LEND = k.newlabel("B"), k.newlabel("C"), k.newlabel("end")
    k(f"s_cmp_ge_u32 s2, {K0_NWG}")
    k(f"s_cbranch_scc1 {LEND}")
    k(f"s_load_dwordx2 s[8:9], s[0:1], {KA_WS}")
    k(f"s_load_dwordx4 s[4:7], s[0:1], {KA_C}")
    k(f"s_load_dwordx4 s[24:27], s[0:1], {KA_X}")
    k(f"s_load_dwordx2 s[28:29], s[0:1], {KA_WI}")
    k("v_lshrrev_b32 v1, 6, v0")
    k("v_and_b32 v2, 63, v0")
    k("v_readfirstlane_b32 s3, v1")
    k("s_waitcnt lgkmcnt(0)")
    srd(k, 20, 8, WS_END)
    k(f"s_cmp_ge_u32 s2, {K0_NB}")
    k(f"s_cbranch_scc0 {LB}")
    k(f"s_cmp_ge_u32 s2, {K0_NB + K0_NA}")
    k(f"s_cbranch_scc1 {LC}")
    srd(k, 12, 6, 1024 * 12288)
    srd(k, 16, 4, 2048)
    k(f"s_sub_u32 s30, s2, {K0_NB}")
    k("s_lshr_b32 s31, s30, 3")
    k("s_and_b32 s30, s30, 7")
    k("v_and_b32 v3, 7, v0")
    k("v_lshrrev_b32 v4, 3, v0")
    k("s_lshl_b32 s32, s30, 7")
    k("v_add_u32 v4, s32, v4")
    k("v_mul_u32_u24 v5, 12288, v4")
    k("v_lshl_add_u32 v5, v3, 4, v5")
    k("v_lshlrev_b32 v6, 1, v4")
    k("s_lshl_b32 s33, s31, 7")
    for j in range(4):
        k(f"buffer_load_ushort v{8+j}, v6, s[16:19], 0 offen offset:{64*j}")
    for j in range(4):
        if j:
            k(f"s_add_u32 s33, s33, {32*12288}")
        k(f"buffer_load_dwordx4 v[{16+4*j}:{19+4*j}], v5, s[12:15], s33 offen")
    k("s_waitcnt vmcnt(4)")
    for j in range(4):
        k(f"v_lshlrev_b32 v{8+j}, 16, v{8+j}")
    for j in range(4):
        k(f"v_mul_f32 v{12+j}, {f32hex(-LOG2E)}, v{8+j}")
    for j in range(4):
        k(f"v_exp_f32 v{12+j}, v{12+j}")
    for j in range(4):
        k(f"v_add_f32 v{12+j}, 1.0, v{12+j}")
    for j in range(4):
        k(f"v_rcp_f32 v{12+j}, v{12+j}")
    for j in range(4):
        k(f"v_mul_f32 v{8+j}, v{8+j}, v{12+j}")
    for j in range(4):
        round_bf16(k, 8 + j, 8 + j)
    A = 40
    for j in range(4):
        k(f"s_waitcnt vmcnt({3-j})")
        for i in range(4):
            k(f"v_lshlrev_b32 v{32+2*i}, 16, v{16+4*j+i}")
            k(f"v_and_b32 v{33+2*i}, 0xffff0000, v{16+4*j+i}")
        for i in range(8):
            if j == 0:
                k(f"v_mul_f32 v{A+i}, v{8+j}, v{32+i}")
            else:
                k(f"v_fmac_f32 v{A+i}, v{8+j}, v{32+i}")
    for i in range(4):
        k(f"v_permlane32_swap_b32 v{A+i}, v{A+4+i}")
    for i in range(4):
        k(f"v_add_f32 v{A+i}, v{A+i}, v{A+4+i}")
    for i in range(2):
        k(f"v_permlane16_swap_b32 v{A+i}, v{A+2+i}")
    for i in range(2):
        k(f"v_add_f32 v{A+i}, v{A+i}, v{A+2+i}")
    for i in range(2):
        k(f"v_add_f32_dpp v{A+i}, v{A+i}, v{A+i} row_ror:8 row_mask:0xf bank_mask:0xf")
    k("v_lshlrev_b32 v7, 5, v3")
    k("v_lshrrev_b32 v8, 4, v2")
    k("v_lshl_add_u32 v7, v8, 3, v7")
    k("v_lshl_add_u32 v7, v1, 8, v7")
    k(f"ds_write_b64 v7, v[{A}:{A+1}]")
    k("s_waitcnt lgkmcnt(0)")
    k("s_barrier")
    k("s_cmp_lg_u32 s3, 0")
    k(f"s_cbranch_scc1 {LEND}")
    k("v_lshlrev_b32 v7, 2, v2")
    k("ds_read2st64_b32 v[8:9], v7 offset0:0 offset1:1")
    k("ds_read2st64_b32 v[10:11], v7 offset0:2 offset1:3")
    k("s_mul_i32 s34, s30, 24576")
    k("s_lshl_b32 s35, s31, 8")
    k("s_add_u32 s34, s34, s35")
    k(f"s_add_u32 s34, s34, {MODP}")
    k("s_waitcnt lgkmcnt(0)")
    k("v_add_f32 v8, v8, v9")
    k("v_add_f32 v10, v10, v11")
    k("v_add_f32 v8, v8, v10")
    k("buffer_store_dword v8, v7, s[20:23], s34 offen")
    k("s_endpgm")
    k.label(LB)
    srd(k, 12, 24, S * D * 2)
    k("s_lshr_b32 s30, s3, 1")
    k("s_lshl_b32 s30, s30, 4")
    k("s_and_b32 s31, s3, 1")
    k("s_lshl_b32 s31, s31, 1")
    k("s_add_u32 s30, s30, s31")
    k("s_bfe_u32 s31, s2, 0x20004")
    k("s_lshl_b32 s31, s31, 2")
    k("s_add_u32 s30, s30, s31")
    k("s_lshl_b32 s30, s30, 6")
    k("s_lshr_b32 s31, s2, 6")
    k("s_lshl_b32 s31, s31, 4")
    k("s_add_u32 s30, s30, s31")
    k("s_and_b32 s31, s2, 15")
    k("s_add_u32 s30, s30, s31")
    k("s_lshl_b32 s30, s30, 11")
    k("v_and_b32 v3, 1, v2")
    k("v_lshlrev_b32 v3, 17, v3")
    k("v_bfe_u32 v4, v2, 1, 3")
    k("v_lshl_add_u32 v3, v4, 3, v3")
    k("v_lshrrev_b32 v4, 4, v2")
    k("v_lshl_add_u32 v3, v4, 6, v3")
    for j in range(8):
        k(f"buffer_load_dwordx2 v[{8+2*j}:{9+2*j}], v3, s[12:15], s30 offen offset:{256*j}")
    X = 24
    for j in range(8):
        k(f"s_waitcnt vmcnt({7-j})")
        k(f"v_lshlrev_b32 v{X+4*j}, 16, v{8+2*j}")
        k(f"v_and_b32 v{X+4*j+1}, 0xffff0000, v{8+2*j}")
        k(f"v_lshlrev_b32 v{X+4*j+2}, 16, v{9+2*j}")
        k(f"v_and_b32 v{X+4*j+3}, 0xffff0000, v{9+2*j}")
        if j == 0:
            k(f"v_pk_add_f32 v[56:57], v[{X}:{X+1}], v[{X+2}:{X+3}]")
            k(f"v_pk_mul_f32 v[58:59], v[{X}:{X+1}], v[{X}:{X+1}]")
            k(f"v_pk_mul_f32 v[60:61], v[{X+2}:{X+3}], v[{X+2}:{X+3}]")
        else:
            b = X + 4 * j
            k(f"v_pk_add_f32 v[56:57], v[56:57], v[{b}:{b+1}]")
            k(f"v_pk_fma_f32 v[58:59], v[{b}:{b+1}], v[{b}:{b+1}], v[58:59]")
            k(f"v_pk_add_f32 v[56:57], v[56:57], v[{b+2}:{b+3}]")
            k(f"v_pk_fma_f32 v[60:61], v[{b+2}:{b+3}], v[{b+2}:{b+3}], v[60:61]")
    k("v_pk_add_f32 v[58:59], v[58:59], v[60:61]")
    k("v_add_f32 v56, v56, v57")
    k("v_add_f32 v58, v58, v59")
    k("v_permlane32_swap_b32 v56, v58")
    k("v_add_f32 v56, v56, v58")
    k("v_mov_b32 v57, v56")
    k("v_permlane16_swap_b32 v57, v56")
    k("v_add_f32 v56, v56, v57")
    k("v_add_f32_dpp v56, v56, v56 quad_perm:[2,3,0,1] row_mask:0xf bank_mask:0xf")
    k("v_add_f32_dpp v56, v56, v56 row_ror:4 row_mask:0xf bank_mask:0xf")
    k("v_add_f32_dpp v56, v56, v56 row_ror:8 row_mask:0xf bank_mask:0xf")
    k("v_mov_b32 v57, v56")
    k("v_permlane32_swap_b32 v57, v56")
    ln_stats(k, 57, 56, 60, 58)
    for j in range(8):
        for h in range(2):
            b = X + 4 * j + 2 * h
            k(f"v_pk_fma_f32 v[{b}:{b+1}], v[{b}:{b+1}], v[60:61], v[60:61] op_sel:[0,0,1] op_sel_hi:[1,0,1]")
    k("s_lshl_b32 s31, s2, 2")
    k("s_add_u32 s31, s31, s3")
    k("s_lshl_b32 s31, s31, 12")
    k(f"s_add_u32 s31, s31, {XH}")
    k("v_lshlrev_b32 v3, 4, v2")
    for t in range(4):
        for jj in range(4):
            k(f"v_cvt_pk_bf16_f32 v{8+4*t+jj}, v{X+8*jj+t}, v{X+8*jj+4+t}")
        k(f"buffer_store_dwordx4 v[{8+4*t}:{11+4*t}], v3, s[20:23], s31 offen offset:{1024*t}")
    k("s_endpgm")
    k.label(LC)
    srd(k, 12, 26, S * NCOL * 2)
    srd(k, 16, 28, S * NCOL * 2)
    k(f"s_sub_u32 s30, s2, {K0_NA + K0_NB}")
    k("s_lshr_b32 s31, s30, 5")
    k("s_and_b32 s30, s30, 31")
    k("s_and_b32 s32, s30, 3")
    k("s_lshr_b32 s33, s30, 2")
    k("s_lshl_b32 s34, s31, 6")
    k("v_add_u32 v3, s34, v2")
    k(f"v_cmp_gt_u32 vcc, {NCOL}, v3")
    k("s_and_saveexec_b64 s[40:41], vcc")
    k(f"s_cbranch_execz {LEND}")
    k("s_lshl_b32 s34, s32, 4")
    k("s_lshl_b32 s35, s3, 2")
    k("s_add_u32 s34, s34, s35")
    k("s_lshl_b32 s35, s33, 8")
    k("s_add_u32 s34, s34, s35")
    k("s_mul_i32 s34, s34, 1026")
    k("v_lshlrev_b32 v4, 1, v3")
    for rr in range(4):
        if rr:
            k(f"s_add_u32 s34, s34, {64*1026}")
        for o in range(4):
            k(f"buffer_load_ushort v{8+4*o+rr}, v4, s[12:15], s34 offen offset:{1026*o}")
            k(f"buffer_load_ushort v{24+4*o+rr}, v4, s[16:19], s34 offen offset:{1026*o}")
    k("s_and_b32 s35, s32, 1")
    k("s_lshl_b32 s35, s35, 8")
    k("s_lshr_b32 s36, s32, 1")
    k("s_lshl_b32 s36, s36, 7")
    k("s_add_u32 s35, s35, s36")
    k("s_lshl_b32 s36, s33, 4")
    k("s_add_u32 s35, s35, s36")
    k("s_lshl_b32 s36, s3, 2")
    k("s_add_u32 s35, s35, s36")
    k("s_lshl_b32 s35, s35, 4")
    k(f"s_add_u32 s35, s35, {WT}")
    k(f"v_mul_u32_u24 v5, {CP}, v3")
    k("s_waitcnt vmcnt(0)")
    for o in range(4):
        for rr in range(4):
            k(f"v_lshl_or_b32 v{8+4*o+rr}, v{24+4*o+rr}, 16, v{8+4*o+rr}")
        k(f"buffer_store_dwordx4 v[{8+4*o}:{11+4*o}], v5, s[20:23], s35 offen offset:{16*o}")
    k.label(LEND)
    k("s_endpgm")
    return k, dict(grid=K0_NWG, block=256, lds=1024)


def ln_stats(k, vsum, vsq, out, tmp):
    k(f"v_mul_f32 v{vsum}, {f32hex(1/1024)}, v{vsum}")
    k(f"v_mul_f32 v{tmp}, v{vsum}, v{vsum}")
    k(f"v_fma_f32 v{vsq}, v{vsq}, s98, -v{tmp}") if False else None
    k(f"v_mul_f32 v{vsq}, {f32hex(1/1024)}, v{vsq}")
    k(f"v_sub_f32 v{vsq}, v{vsq}, v{tmp}")
    k(f"v_max_f32 v{vsq}, 0, v{vsq}")
    k(f"v_cvt_pk_bf16_f32 v{tmp}, v{vsum}, v{vsq}")
    k(f"v_and_b32 v{vsq}, 0xffff0000, v{tmp}")
    k(f"v_lshlrev_b32 v{vsum}, 16, v{tmp}")
    k(f"v_add_f32 v{vsq}, {f32hex(1e-5)}, v{vsq}")
    round_bf16(k, vsq, vsq)
    k(f"v_sqrt_f32 v{vsq}, v{vsq}")
    round_bf16(k, vsq, vsq)
    k(f"v_rcp_f32 v{out}, v{vsq}")
    k(f"v_mul_f32 v{out+1}, v{vsum}, v{out}")
    k(f"v_sub_f32 v{out+1}, 0, v{out+1}")
```

```python
KA_X, KA_WR, KA_WI, KA_BX, KA_W1, KA_B1, KA_W2, KA_B2, KA_C, KA_WMOD, KA_OUT, KA_DBG, KA_WS = [8 * i for i in range(13)]

S, D, F = 2048, 1024, 3584
NCOL = 513

WS_BYTES = 268435456
MODP = 0x0000000
MODF = 0x0040000
SILU = 0x0050000
XH = 0x0100000
WT = 0x0500000
F1 = 0x0A00000
F2 = 0x0F00000
X1 = 0x1400000
Y3 = 0x1800000
HH = 0x1C00000
WS_END = 0x2C00000
CP = 8192
KS0 = 4
```

```python
import sys
sys.path.insert(0, 'dev')
from asmlib import *
from layout import *
import importlib

def build(kernels, path, tables=""):
    ref = open('adaLN_cond__spectral_gfnet__mixer_channel_mlp__prompt.s.ref').read()
    hdr = []
    for line in ref.splitlines():
        if line.startswith('; Override') : break
        hdr.append(line)
    hdr = "\n".join(hdr) + "\n"
    txt = '.amdgcn_target "amdgcn-amd-amdhsa--gfx950"\n'
    desc = ""
    for k, cfg in kernels:
        hdr += f"; @launch kernel={k.name} grid=({cfg['grid']},1,1) block=({cfg['block']},1,1) lds={cfg['lds']}\n"
        txt += kernel_text(k)
        nv, ns, na = max_regs(k)
        desc += descriptor(k.name, nv, max(ns, 16), agprs=na)
        print(k.name, 'vgpr', nv, 'sgpr', ns, 'agpr', na, 'nops', k.n_nops, 'instrs', sum(1 for x in k.items if x[0]=='i'))
    open(path, 'w').write(hdr + txt + tables + '.text\ncode_end:\n' + desc)

if __name__ == '__main__':
    import os
    Kernel.STAMPS = os.environ.get('STAMPS') == '1'
    Kernel.DBG = os.environ.get('DBG') == '1'
    import k0
    ks = [k0.gen_k0()]
    tables = ""
    for name in ('k1', 'k2', 'tail'):
        try:
            m = importlib.import_module(name)
        except ModuleNotFoundError:
            break
        ks.append(getattr(m, 'gen_' + name)())
        if hasattr(m, 'tables'):
            tables += m.tables()
    out = sys.argv[1] if len(sys.argv) > 1 else 'adaLN_cond__spectral_gfnet__mixer_channel_mlp__prompt.s'
    build(ks, out, tables)
```

```python
from asmlib import *
from layout import *

def srd(k, dst, ptr, nbytes):
    k(f"s_mov_b32 s{dst}, s{ptr}")
    k(f"s_mov_b32 s{dst+1}, s{ptr+1}")
    k(f"s_mov_b32 s{dst+2}, {nbytes}")
    k(f"s_mov_b32 s{dst+3}, 0x20000")

def round_bf16(k, dst, src):
    k(f"v_cvt_pk_bf16_f32 v{dst}, v{src}, v{src}")
    k(f"v_and_b32 v{dst}, 0xffff0000, v{dst}")

q4 = lambda r: f"v[{r}:{r+3}]"
q2 = lambda r: f"v[{r}:{r+1}]"

def job_gv(k, sidx, cb0):
    k(f"s_load_dwordx2 s[4:5], s[0:1], {KA_WMOD}")
    k(f"s_lshr_b32 s31, s{sidx}, 3")
    k(f"s_add_u32 s31, s31, {cb0}")
    k(f"s_and_b32 s30, s{sidx}, 7")
    k("v_and_b32 v3, 7, v2")
    k("v_lshrrev_b32 v4, 3, v2")
    k(f"v_mul_u32_u24 v5, {16*12288}, v4")
    k("v_lshl_add_u32 v5, v3, 4, v5")
    k("v_lshlrev_b32 v6, 6, v4")
    k("s_lshl_b32 s32, s30, 9")
    k(f"s_add_u32 s32, s32, {SILU}")
    for x in range(4):
        k(f"buffer_load_dwordx4 {q4(8+4*x)}, v6, s[20:23], s32 offen offset:{16*x}")
    k(f"s_mul_i32 s33, s30, {128*12288}")
    k("s_lshl_b32 s34, s31, 7")
    k("s_add_u32 s33, s33, s34")
    k("s_waitcnt lgkmcnt(0)")
    srd(k, 12, 4, 1024 * 12288)
    W = 48
    for j in range(16):
        k(f"buffer_load_dwordx4 {q4(W+4*j)}, v5, s[12:15], s33 offen nt")
        if j < 15:
            k("s_add_u32 s33, s33, 12288")
    A = 24
    for j in range(16):
        k(f"s_waitcnt vmcnt({15-j})")
        for i in range(4):
            k(f"v_lshlrev_b32 v{32+2*i}, 16, v{W+4*j+i}")
            k(f"v_and_b32 v{33+2*i}, 0xffff0000, v{W+4*j+i}")
        sp = 8 + (j & ~1)
        sel = "op_sel:[0,1,0] op_sel_hi:[1,1,1]" if j & 1 else "op_sel_hi:[1,0,1]"
        for i in range(4):
            if j == 0:
                k(f"v_pk_mul_f32 {q2(A+2*i)}, {q2(32+2*i)}, {q2(sp)} op_sel_hi:[1,0]")
            else:
                k(f"v_pk_fma_f32 {q2(A+2*i)}, {q2(32+2*i)}, {q2(sp)}, {q2(A+2*i)} {sel}")
    for i in range(4):
        k(f"v_permlane32_swap_b32 v{A+i}, v{A+4+i}")
    for i in range(0, 4, 2):
        k(f"v_pk_add_f32 {q2(A+i)}, {q2(A+i)}, {q2(A+4+i)}")
    for i in range(2):
        k(f"v_permlane16_swap_b32 v{A+i}, v{A+2+i}")
    k(f"v_pk_add_f32 {q2(A)}, {q2(A)}, {q2(A+2)}")
    for i in range(2):
        k(f"v_add_f32_dpp v{A+i}, v{A+i}, v{A+i} row_ror:8 row_mask:0xf bank_mask:0xf")
    k("v_lshlrev_b32 v7, 5, v3")
    k("v_lshrrev_b32 v8, 4, v2")
    k("v_lshl_add_u32 v7, v8, 3, v7")
    k("s_mul_i32 s34, s30, 24576")
    k("s_lshl_b32 s35, s31, 8")
    k("s_add_u32 s34, s34, s35")
    k(f"s_add_u32 s34, s34, {MODP}") if MODP else None
    k(f"buffer_store_dwordx2 {q2(A)}, v7, s[20:23], s34 offen")

def job_fin(k, sidx, m0):
    k(f"s_lshl_b32 s31, s{sidx}, 8")
    k("v_lshlrev_b32 v4, 2, v2")
    for p in range(8):
        k(f"s_add_u32 s32, s31, {MODP + p*24576 + (2048 + 1024*m0)*4}")
        k(f"buffer_load_dword v{8+p}, v4, s[20:23], s32 offen")
    k(f"s_lshr_b32 s33, s{sidx}, 4")
    k(f"s_add_u32 s33, s33, {m0}") if m0 else None
    k(f"s_and_b32 s34, s{sidx}, 15")
    k("s_lshl_b32 s34, s34, 8")
    k("s_lshl_b32 s35, s33, 1")
    k("s_and_b32 s35, s35, 2")
    k("s_lshr_b32 s36, s33, 1")
    k("s_or_b32 s35, s35, s36")
    k("s_lshl_b32 s35, s35, 12")
    k("s_add_u32 s34, s34, s35")
    k(f"s_add_u32 s34, s34, {MODF}")
    k("s_cmp_eq_u32 s33, 2")
    k("s_cselect_b32 s37, 1.0, 0")
    k("s_waitcnt vmcnt(0)")
    k("v_add_f32 v8, v8, v9")
    k("v_add_f32 v10, v10, v11")
    k("v_add_f32 v12, v12, v13")
    k("v_add_f32 v14, v14, v15")
    k("v_add_f32 v8, v8, v10")
    k("v_add_f32 v12, v12, v14")
    k("v_add_f32 v8, v8, v12")
    round_bf16(k, 8, 8)
    k("v_add_f32 v8, s37, v8")
    round_bf16(k, 8, 8)
    k("buffer_store_dword v8, v4, s[20:23], s34 offen")

def job_filter(k, sidx):
    k(f"s_load_dwordx4 s[4:7], s[0:1], {KA_WR}")
    k(f"s_and_b32 s30, s{sidx}, 3")
    k(f"s_bfe_u32 s31, s{sidx}, 0x40002")
    k(f"s_lshr_b32 s33, s{sidx}, 6")
    k("s_lshl_b32 s34, s31, 2")
    k("s_lshl_b32 s35, s33, 8")
    k("s_add_u32 s34, s34, s35")
    k("s_mul_i32 s34, s34, 1026")
    k("s_lshl_b32 s35, s30, 8")
    k("s_add_u32 s34, s34, s35")
    k("v_and_b32 v3, 3, v2")
    k("v_lshrrev_b32 v4, 2, v2")
    k("v_mul_u32_u24 v5, 1026, v3")
    k("v_lshl_add_u32 v5, v4, 4, v5")
    k("s_waitcnt lgkmcnt(0)")
    srd(k, 12, 4, S * NCOL * 2)
    srd(k, 16, 6, S * NCOL * 2)
    R, I = 8, 24
    for rr in range(4):
        k(f"buffer_load_dwordx4 {q4(R+4*rr)}, v5, s[12:15], s34 offen nt")
        k(f"buffer_load_dwordx4 {q4(I+4*rr)}, v5, s[16:19], s34 offen nt")
        if rr < 3:
            k(f"s_add_u32 s34, s34, {64*1026}")
    k("s_bfe_u32 s35, s31, 0x10002")
    k("s_lshl_b32 s35, s35, 8")
    k("s_bfe_u32 s36, s31, 0x10003")
    k("s_lshl_b32 s36, s36, 7")
    k("s_add_u32 s35, s35, s36")
    k("s_lshl_b32 s36, s33, 4")
    k("s_add_u32 s35, s35, s36")
    k("s_and_b32 s36, s31, 3")
    k("s_lshl_b32 s36, s36, 2")
    k("s_add_u32 s35, s35, s36")
    k("s_lshl_b32 s35, s35, 4")
    k(f"s_mul_i32 s36, s30, {128*CP}")
    k("s_add_u32 s35, s35, s36")
    k(f"s_add_u32 s35, s35, {WT}")
    k(f"v_mul_u32_u24 v6, {8*CP}, v4")
    k("v_lshl_add_u32 v6, v3, 4, v6")
    k("s_mov_b32 s36, 0x05040100")
    k("s_mov_b32 s37, 0x07060302")
    k("s_waitcnt vmcnt(0)")
    O = 40
    for e in range(8):
        o = O + 4 * e
        for rr in range(4):
            k(f"v_perm_b32 v{o+rr}, v{I+4*rr+(e>>1)}, v{R+4*rr+(e>>1)}, s{36+(e&1)}")
        k(f"buffer_store_dwordx4 {q4(o)}, v6, s[20:23], s35 offen")
        if e < 7:
            k(f"s_add_u32 s35, s35, {CP}")

def job_filter512(k, sidx):
    k(f"s_load_dwordx4 s[4:7], s[0:1], {KA_WR}")
    k(f"s_lshr_b32 s30, s{sidx}, 2")
    k("s_lshl_b32 s30, s30, 4")
    k(f"s_bfe_u32 s31, s{sidx}, 0x10001")
    k("s_lshl_b32 s31, s31, 5")
    k("s_add_u32 s30, s30, s31")
    k(f"s_and_b32 s31, s{sidx}, 1")
    k("s_lshl_b32 s31, s31, 10")
    k("s_add_u32 s30, s30, s31")
    k("s_mul_i32 s30, s30, 1026")
    k("s_add_u32 s30, s30, 1024")
    k("v_and_b32 v3, 15, v2")
    k("v_lshrrev_b32 v4, 4, v2")
    k("v_lshl_add_u32 v3, v4, 8, v3")
    k("v_mul_u32_u24 v3, 1026, v3")
    k("s_waitcnt lgkmcnt(0)")
    srd(k, 12, 4, S * NCOL * 2)
    srd(k, 16, 6, S * NCOL * 2)
    for rr in range(4):
        k(f"buffer_load_ushort v{8+rr}, v3, s[12:15], s30 offen")
        k(f"buffer_load_ushort v{12+rr}, v3, s[16:19], s30 offen")
        if rr < 3:
            k(f"s_add_u32 s30, s30, {64*1026}")
    k(f"s_lshl_b32 s31, s{sidx}, 10")
    k(f"s_add_u32 s31, s31, {WT + 512*CP}")
    k("v_lshlrev_b32 v4, 4, v2")
    k("s_waitcnt vmcnt(0)")
    for rr in range(4):
        k(f"v_lshl_or_b32 v{8+rr}, v{12+rr}, 16, v{8+rr}")
    k("buffer_store_dwordx4 v[8:11], v4, s[20:23], s31 offen")

def job_prefetch(k, sidx, ka_off, nbytes, per_wave_kb):
    k(f"s_load_dwordx2 s[4:5], s[0:1], {ka_off}")
    k(f"s_mul_i32 s30, s{sidx}, {per_wave_kb*1024}")
    k("v_lshlrev_b32 v3, 4, v2")
    k("s_waitcnt lgkmcnt(0)")
    srd(k, 12, 4, nbytes)
    for j in range(per_wave_kb):
        if j and j % 4 == 0:
            k("s_add_u32 s30, s30, 4096")
        k(f"buffer_load_dwordx4 {q4(8+4*(j%16))}, v3, s[12:15], s30 offen offset:{(j%4)*1024}")
    k("s_waitcnt vmcnt(0)")

def dispatch_jobs(k, first_wg, waves_per_wg, jobs, lend, kidx=None):
    k(f"s_sub_u32 s50, s2, {first_wg}")
    k(f"s_mul_i32 s50, s50, {waves_per_wg}")
    k("s_add_u32 s50, s50, s3")
    tot = 0
    for n, fn in jobs:
        nxt = k.newlabel("job")
        k(f"s_cmp_ge_u32 s50, {n}")
        k(f"s_cbranch_scc1 {nxt}")
        fn(k, 50)
        if Kernel.STAMPS and kidx is not None:
            sv = k.nstamps
            k.stamp(1)
            k("s_waitcnt vmcnt(0)")
            k.stamp(2)
            k.nstamps = 3
            k.stamp_flush(kidx)
            k.nstamps = sv
        k("s_endpgm")
        k.label(nxt)
        k(f"s_sub_u32 s50, s50, {n}")
        tot += n
    k(f"s_branch {lend}")
    return (tot + waves_per_wg - 1) // waves_per_wg
```

```python
from asmlib import *
from layout import *
from jobs import *

LOG2E = 1.4426950408889634
K0_NA, K0_NB = 32 * KS0, 256
K0_NWG = K0_NA + K0_NB

def gen_k0():
    k = Kernel("k0_kernel")
    LB, LEND = k.newlabel("B"), k.newlabel("end")
    def fin():
        k.stamp(3)
        if Kernel.STAMPS:
            k("s_waitcnt vmcnt(0)")
        k.stamp(4)
        k.stamp_flush(0)
    k(f"s_cmp_ge_u32 s2, {K0_NWG}")
    k(f"s_cbranch_scc1 {LEND}")
    k.stamp(0)
    k(f"s_load_dwordx2 s[8:9], s[0:1], {KA_WS}")
    k(f"s_load_dwordx4 s[4:7], s[0:1], {KA_C}")
    k(f"s_load_dwordx2 s[24:25], s[0:1], {KA_X}")
    k("v_lshrrev_b32 v1, 6, v0")
    k("v_and_b32 v2, 63, v0")
    k("v_readfirstlane_b32 s3, v1")
    k(f"s_cmp_ge_u32 s2, {K0_NA}")
    k(f"s_cbranch_scc1 {LB}")
    NJ = 1024 // KS0 // 32
    k(f"s_lshr_b32 s31, s2, {KS0.bit_length()-1}")
    k(f"s_and_b32 s30, s2, {KS0-1}")
    k("v_and_b32 v3, 7, v0")
    k("v_lshrrev_b32 v4, 3, v0")
    k(f"v_mul_u32_u24 v5, {NJ*12288}, v4")
    k("v_lshl_add_u32 v5, v3, 4, v5")
    k("v_lshlrev_b32 v6, 4, v4")
    k(f"s_mul_i32 s33, s30, {32*NJ*12288}")
    k("s_lshl_b32 s34, s31, 7")
    k("s_add_u32 s33, s33, s34")
    k("s_lshl_b32 s32, s30, 9")
    k("s_waitcnt lgkmcnt(0)")
    srd(k, 12, 6, 1024 * 12288)
    srd(k, 16, 4, 2048)
    srd(k, 20, 8, WS_END)
    k.stamp(1)
    k("buffer_load_dwordx4 v[8:11], v6, s[16:19], s32 offen")
    W = 48
    for j in range(NJ):
        k(f"buffer_load_dwordx4 {q4(W+4*j)}, v5, s[12:15], s33 offen nt")
        if j < NJ - 1:
            k(f"s_add_u32 s33, s33, 12288")
    k(f"s_waitcnt vmcnt({NJ})")
    C, E = 16, 24
    for i in range(4):
        k(f"v_lshlrev_b32 v{C+2*i}, 16, v{8+i}")
        k(f"v_and_b32 v{C+2*i+1}, 0xffff0000, v{8+i}")
    for j in range(8):
        k(f"v_mul_f32 v{E+j}, {f32hex(-LOG2E)}, v{C+j}")
    for j in range(8):
        k(f"v_exp_f32 v{E+j}, v{E+j}")
    for j in range(8):
        k(f"v_add_f32 v{E+j}, 1.0, v{E+j}")
    for j in range(8):
        k(f"v_rcp_f32 v{E+j}, v{E+j}")
    for j in range(0, 8, 2):
        k(f"v_pk_mul_f32 {q2(C+j)}, {q2(C+j)}, {q2(E+j)}")
    for j in range(0, 8, 2):
        k(f"v_cvt_pk_bf16_f32 v{E+j}, v{C+j}, v{C+j+1}")
    for j in range(0, 8, 2):
        k(f"v_lshlrev_b32 v{C+j}, 16, v{E+j}")
        k(f"v_and_b32 v{C+j+1}, 0xffff0000, v{E+j}")
    A = 40
    for j in range(NJ):
        k(f"s_waitcnt vmcnt({NJ-1-j})")
        for i in range(4):
            k(f"v_lshlrev_b32 v{32+2*i}, 16, v{W+4*j+i}")
            k(f"v_and_b32 v{33+2*i}, 0xffff0000, v{W+4*j+i}")
        sp = C + (j & ~1)
        sel = "op_sel:[0,1,0] op_sel_hi:[1,1,1]" if j & 1 else "op_sel_hi:[1,0,1]"
        for i in range(4):
            if j == 0:
                k(f"v_pk_mul_f32 {q2(A+2*i)}, {q2(32+2*i)}, {q2(sp)} op_sel_hi:[1,0]")
            else:
                k(f"v_pk_fma_f32 {q2(A+2*i)}, {q2(32+2*i)}, {q2(sp)}, {q2(A+2*i)} {sel}")
    k.stamp(2)
    for i in range(4):
        k(f"v_permlane32_swap_b32 v{A+i}, v{A+4+i}")
    for i in range(0, 4, 2):
        k(f"v_pk_add_f32 {q2(A+i)}, {q2(A+i)}, {q2(A+4+i)}")
    for i in range(2):
        k(f"v_permlane16_swap_b32 v{A+i}, v{A+2+i}")
    k(f"v_pk_add_f32 {q2(A)}, {q2(A)}, {q2(A+2)}")
    for i in range(2):
        k(f"v_add_f32_dpp v{A+i}, v{A+i}, v{A+i} row_ror:8 row_mask:0xf bank_mask:0xf")
    k("v_lshlrev_b32 v7, 5, v3")
    k("v_lshrrev_b32 v8, 4, v2")
    k("v_lshl_add_u32 v7, v8, 3, v7")
    k("v_lshl_add_u32 v7, v1, 8, v7")
    k(f"ds_write_b64 v7, v[{A}:{A+1}]")
    LNS = k.newlabel("nosilu")
    k("s_cmp_lg_u32 s31, 0")
    k(f"s_cbranch_scc1 {LNS}")
    k("v_lshlrev_b32 v6, 5, v4")
    k("s_lshl_b32 s32, s30, 10")
    k(f"s_add_u32 s32, s32, {SILU}")
    k(f"buffer_store_dwordx4 {q4(C)}, v6, s[20:23], s32 offen")
    k(f"buffer_store_dwordx4 {q4(C+4)}, v6, s[20:23], s32 offen offset:16")
    k.label(LNS)
    k("s_waitcnt lgkmcnt(0)")
    k("s_barrier")
    k("s_cmp_lg_u32 s3, 0")
    k(f"s_cbranch_scc1 {LEND}")
    k("v_lshlrev_b32 v7, 2, v2")
    k("ds_read2st64_b32 v[8:9], v7 offset0:0 offset1:1")
    k("ds_read2st64_b32 v[10:11], v7 offset0:2 offset1:3")
    k("s_mul_i32 s34, s30, 24576")
    k("s_lshl_b32 s35, s31, 8")
    k("s_add_u32 s34, s34, s35")
    k("s_waitcnt lgkmcnt(0)")
    k("v_add_f32 v8, v8, v9")
    k("v_add_f32 v10, v10, v11")
    k("v_add_f32 v8, v8, v10")
    k("buffer_store_dword v8, v7, s[20:23], s34 offen")
    fin()
    k("s_endpgm")
    k.label(LB)
    k(f"s_sub_u32 s29, s2, {K0_NA}")
    k("s_lshr_b32 s30, s3, 1")
    k("s_lshl_b32 s30, s30, 4")
    k("s_and_b32 s31, s3, 1")
    k("s_lshl_b32 s31, s31, 1")
    k("s_add_u32 s30, s30, s31")
    k("s_bfe_u32 s31, s29, 0x20004")
    k("s_lshl_b32 s31, s31, 2")
    k("s_add_u32 s30, s30, s31")
    k("s_lshl_b32 s30, s30, 6")
    k("s_lshr_b32 s31, s29, 6")
    k("s_lshl_b32 s31, s31, 4")
    k("s_add_u32 s30, s30, s31")
    k("s_and_b32 s31, s29, 15")
    k("s_add_u32 s30, s30, s31")
    k("s_lshl_b32 s30, s30, 11")
    k("v_and_b32 v3, 1, v2")
    k("v_lshlrev_b32 v3, 17, v3")
    k("v_bfe_u32 v4, v2, 1, 3")
    k("v_lshl_add_u32 v3, v4, 3, v3")
    k("v_lshrrev_b32 v4, 4, v2")
    k("v_lshl_add_u32 v3, v4, 6, v3")
    k("s_waitcnt lgkmcnt(0)")
    srd(k, 12, 24, S * D * 2)
    srd(k, 20, 8, WS_END)
    k.stamp(1)
    for j in range(8):
        k(f"buffer_load_dwordx2 v[{8+2*j}:{9+2*j}], v3, s[12:15], s30 offen offset:{256*j}")
    X = 24
    for j in range(8):
        k(f"s_waitcnt vmcnt({7-j})")
        k(f"v_lshlrev_b32 v{X+4*j}, 16, v{8+2*j}")
        k(f"v_and_b32 v{X+4*j+1}, 0xffff0000, v{8+2*j}")
        k(f"v_lshlrev_b32 v{X+4*j+2}, 16, v{9+2*j}")
        k(f"v_and_b32 v{X+4*j+3}, 0xffff0000, v{9+2*j}")
        if j == 0:
            k(f"v_pk_add_f32 v[56:57], v[{X}:{X+1}], v[{X+2}:{X+3}]")
            k(f"v_pk_mul_f32 v[58:59], v[{X}:{X+1}], v[{X}:{X+1}]")
            k(f"v_pk_mul_f32 v[60:61], v[{X+2}:{X+3}], v[{X+2}:{X+3}]")
        else:
            b = X + 4 * j
            k(f"v_pk_add_f32 v[56:57], v[56:57], v[{b}:{b+1}]")
            k(f"v_pk_fma_f32 v[58:59], v[{b}:{b+1}], v[{b}:{b+1}], v[58:59]")
            k(f"v_pk_add_f32 v[56:57], v[56:57], v[{b+2}:{b+3}]")
            k(f"v_pk_fma_f32 v[60:61], v[{b+2}:{b+3}], v[{b+2}:{b+3}], v[60:61]")
    k.stamp(2)
    k("v_pk_add_f32 v[58:59], v[58:59], v[60:61]")
    k("v_add_f32 v56, v56, v57")
    k("v_add_f32 v58, v58, v59")
    k("v_permlane32_swap_b32 v56, v58")
    k("v_add_f32 v56, v56, v58")
    k("v_mov_b32 v57, v56")
    k("v_permlane16_swap_b32 v57, v56")
    k("v_add_f32 v56, v56, v57")
    k("v_add_f32_dpp v56, v56, v56 quad_perm:[2,3,0,1] row_mask:0xf bank_mask:0xf")
    k("v_add_f32_dpp v56, v56, v56 row_ror:4 row_mask:0xf bank_mask:0xf")
    k("v_add_f32_dpp v56, v56, v56 row_ror:8 row_mask:0xf bank_mask:0xf")
    k("v_mov_b32 v57, v56")
    k("v_permlane32_swap_b32 v57, v56")
    ln_stats(k, 57, 56, 60, 58)
    for j in range(8):
        for h in range(2):
            b = X + 4 * j + 2 * h
            k(f"v_pk_fma_f32 v[{b}:{b+1}], v[{b}:{b+1}], v[60:61], v[60:61] op_sel:[0,0,1] op_sel_hi:[1,0,1]")
    k("s_lshl_b32 s31, s29, 2")
    k("s_add_u32 s31, s31, s3")
    k("s_lshl_b32 s31, s31, 12")
    k(f"s_add_u32 s31, s31, {XH}")
    k("v_lshlrev_b32 v3, 4, v2")
    for t in range(4):
        for jj in range(4):
            k(f"v_cvt_pk_bf16_f32 v{8+4*t+jj}, v{X+8*jj+t}, v{X+8*jj+4+t}")
        k(f"buffer_store_dwordx4 v[{8+4*t}:{11+4*t}], v3, s[20:23], s31 offen offset:{1024*t}")
    fin()
    k.label(LEND)
    k("s_endpgm")
    return k, dict(grid=K0_NWG, block=256, lds=1024)


def ln_stats(k, vsum, vsq, out, tmp):
    k(f"v_mul_f32 v{vsum}, {f32hex(1/1024)}, v{vsum}")
    k(f"v_mul_f32 v{tmp}, v{vsum}, v{vsum}")
    k(f"v_mul_f32 v{vsq}, {f32hex(1/1024)}, v{vsq}")
    k(f"v_sub_f32 v{vsq}, v{vsq}, v{tmp}")
    k(f"v_max_f32 v{vsq}, 0, v{vsq}")
    k(f"v_cvt_pk_bf16_f32 v{tmp}, v{vsum}, v{vsq}")
    k(f"v_and_b32 v{vsq}, 0xffff0000, v{tmp}")
    k(f"v_lshlrev_b32 v{vsum}, 16, v{tmp}")
    k(f"v_add_f32 v{vsq}, {f32hex(1e-5)}, v{vsq}")
    round_bf16(k, vsq, vsq)
    k(f"v_sqrt_f32 v{vsq}, v{vsq}")
    round_bf16(k, vsq, vsq)
    k(f"v_rcp_f32 v{out}, v{vsq}")
    k(f"v_mul_f32 v{out+1}, v{vsum}, v{out}")
    k(f"v_sub_f32 v{out+1}, 0, v{out+1}")
```

```python
from asmlib import *
from layout import *
import os
NT = os.environ.get('NT', 'nt')

def srd(k, dst, ptr, nbytes):
    k(f"s_mov_b32 s{dst}, s{ptr}")
    k(f"s_mov_b32 s{dst+1}, s{ptr+1}")
    k(f"s_mov_b32 s{dst+2}, {nbytes}")
    k(f"s_mov_b32 s{dst+3}, 0x20000")

def round_bf16(k, dst, src):
    k(f"v_cvt_pk_bf16_f32 v{dst}, v{src}, v{src}")
    k(f"v_and_b32 v{dst}, 0xffff0000, v{dst}")

q4 = lambda r: f"v[{r}:{r+3}]"
q2 = lambda r: f"v[{r}:{r+1}]"

def job_gv(k, sidx, cb0, sync=None):
    k(f"s_load_dwordx2 s[4:5], s[0:1], {KA_WMOD}")
    k(f"s_lshr_b32 s31, s{sidx}, 3")
    k(f"s_add_u32 s31, s31, {cb0}")
    k(f"s_and_b32 s30, s{sidx}, 7")
    k("v_and_b32 v3, 7, v2")
    k("v_lshrrev_b32 v4, 3, v2")
    k(f"v_mul_u32_u24 v5, {16*12288}, v4")
    k("v_lshl_add_u32 v5, v3, 4, v5")
    k("v_lshlrev_b32 v6, 6, v4")
    k("s_lshl_b32 s32, s30, 9")
    k(f"s_add_u32 s32, s32, {SILU}")
    k(f"s_mul_i32 s33, s30, {128*12288}")
    k("s_lshl_b32 s34, s31, 7")
    k("s_add_u32 s33, s33, s34")
    k("s_waitcnt lgkmcnt(0)")
    srd(k, 12, 4, 1024 * 12288)
    if sync: sync()
    for x in range(4):
        k(f"buffer_load_dwordx4 {q4(8+4*x)}, v6, s[20:23], s32 offen offset:{16*x}")
    W = 48
    for j in range(16):
        k(f"buffer_load_dwordx4 {q4(W+4*j)}, v5, s[12:15], s33 offen {NT}")
        if j < 15:
            k("s_add_u32 s33, s33, 12288")
    if sync: sync(2)
    A = 24
    for j in range(16):
        k(f"s_waitcnt vmcnt({15-j})")
        for i in range(4):
            k(f"v_lshlrev_b32 v{32+2*i}, 16, v{W+4*j+i}")
            k(f"v_and_b32 v{33+2*i}, 0xffff0000, v{W+4*j+i}")
        sp = 8 + (j & ~1)
        sel = "op_sel:[0,1,0] op_sel_hi:[1,1,1]" if j & 1 else "op_sel_hi:[1,0,1]"
        for i in range(4):
            if j == 0:
                k(f"v_pk_mul_f32 {q2(A+2*i)}, {q2(32+2*i)}, {q2(sp)} op_sel_hi:[1,0]")
            else:
                k(f"v_pk_fma_f32 {q2(A+2*i)}, {q2(32+2*i)}, {q2(sp)}, {q2(A+2*i)} {sel}")
    for i in range(4):
        k(f"v_permlane32_swap_b32 v{A+i}, v{A+4+i}")
    for i in range(0, 4, 2):
        k(f"v_pk_add_f32 {q2(A+i)}, {q2(A+i)}, {q2(A+4+i)}")
    for i in range(2):
        k(f"v_permlane16_swap_b32 v{A+i}, v{A+2+i}")
    k(f"v_pk_add_f32 {q2(A)}, {q2(A)}, {q2(A+2)}")
    for i in range(2):
        k(f"v_add_f32_dpp v{A+i}, v{A+i}, v{A+i} row_ror:8 row_mask:0xf bank_mask:0xf")
    k("v_lshlrev_b32 v7, 5, v3")
    k("v_lshrrev_b32 v8, 4, v2")
    k("v_lshl_add_u32 v7, v8, 3, v7")
    k("s_mul_i32 s34, s30, 24576")
    k("s_lshl_b32 s35, s31, 8")
    k("s_add_u32 s34, s34, s35")
    k(f"s_add_u32 s34, s34, {MODP}") if MODP else None
    k(f"buffer_store_dwordx2 {q2(A)}, v7, s[20:23], s34 offen")

def job_fin(k, sidx, m0, sync=None):
    k(f"s_lshl_b32 s31, s{sidx}, 8")
    k("v_lshlrev_b32 v4, 2, v2")
    if sync: sync()
    for p in range(8):
        k(f"s_add_u32 s32, s31, {MODP + p*24576 + (2048 + 1024*m0)*4}")
        k(f"buffer_load_dword v{8+p}, v4, s[20:23], s32 offen")
    if sync: sync(2)
    k(f"s_lshr_b32 s33, s{sidx}, 4")
    k(f"s_add_u32 s33, s33, {m0}") if m0 else None
    k(f"s_and_b32 s34, s{sidx}, 15")
    k("s_lshl_b32 s34, s34, 8")
    k("s_lshl_b32 s35, s33, 1")
    k("s_and_b32 s35, s35, 2")
    k("s_lshr_b32 s36, s33, 1")
    k("s_or_b32 s35, s35, s36")
    k("s_lshl_b32 s35, s35, 12")
    k("s_add_u32 s34, s34, s35")
    k(f"s_add_u32 s34, s34, {MODF}")
    k("s_cmp_eq_u32 s33, 2")
    k("s_cselect_b32 s37, 1.0, 0")
    k("s_waitcnt vmcnt(0)")
    k("v_add_f32 v8, v8, v9")
    k("v_add_f32 v10, v10, v11")
    k("v_add_f32 v12, v12, v13")
    k("v_add_f32 v14, v14, v15")
    k("v_add_f32 v8, v8, v10")
    k("v_add_f32 v12, v12, v14")
    k("v_add_f32 v8, v8, v12")
    round_bf16(k, 8, 8)
    k("v_add_f32 v8, s37, v8")
    round_bf16(k, 8, 8)
    k("buffer_store_dword v8, v4, s[20:23], s34 offen")

def job_filter(k, sidx, sync=None):
    k(f"s_load_dwordx4 s[4:7], s[0:1], {KA_WR}")
    k(f"s_and_b32 s30, s{sidx}, 3")
    k(f"s_bfe_u32 s31, s{sidx}, 0x40002")
    k(f"s_lshr_b32 s33, s{sidx}, 6")
    k("s_lshl_b32 s34, s31, 2")
    k("s_lshl_b32 s35, s33, 8")
    k("s_add_u32 s34, s34, s35")
    k("s_mul_i32 s34, s34, 1026")
    k("s_lshl_b32 s35, s30, 8")
    k("s_add_u32 s34, s34, s35")
    k("v_and_b32 v3, 3, v2")
    k("v_lshrrev_b32 v4, 2, v2")
    k("v_mul_u32_u24 v5, 1026, v3")
    k("v_and_b32 v7, 2, v5")
    k("v_and_b32 v5, -4, v5")
    k("v_lshl_add_u32 v5, v4, 4, v5")
    k("s_bfe_u32 s35, s31, 0x10002")
    k("s_lshl_b32 s35, s35, 8")
    k("s_bfe_u32 s36, s31, 0x10003")
    k("s_lshl_b32 s36, s36, 7")
    k("s_add_u32 s35, s35, s36")
    k("s_lshl_b32 s36, s33, 4")
    k("s_add_u32 s35, s35, s36")
    k("s_and_b32 s36, s31, 3")
    k("s_lshl_b32 s36, s36, 2")
    k("s_add_u32 s35, s35, s36")
    k("s_lshl_b32 s35, s35, 4")
    k(f"s_mul_i32 s36, s30, {128*CP}")
    k("s_add_u32 s35, s35, s36")
    k(f"s_add_u32 s35, s35, {WT}")
    k(f"v_mul_u32_u24 v6, {8*CP}, v4")
    k("v_lshl_add_u32 v6, v3, 4, v6")
    k("s_mov_b32 s36, 0x05040100")
    k("s_mov_b32 s37, 0x07060302")
    k("s_waitcnt lgkmcnt(0)")
    srd(k, 12, 4, S * NCOL * 2)
    srd(k, 16, 6, S * NCOL * 2)
    if sync: sync()
    R, I = 8, 32
    k.stamp(3)
    for rr in range(4):
        k(f"buffer_load_dwordx4 {q4(R+6*rr)}, v5, s[12:15], s34 offen")
        k(f"buffer_load_dword v{R+6*rr+4}, v5, s[12:15], s34 offen offset:16")
        k(f"buffer_load_dwordx4 {q4(I+6*rr)}, v5, s[16:19], s34 offen")
        k(f"buffer_load_dword v{I+6*rr+4}, v5, s[16:19], s34 offen offset:16")
        if rr < 3:
            k(f"s_add_u32 s34, s34, {64*1026}")
    k.stamp(4)
    if sync: sync(2)
    for rr in range(4):
        k(f"s_waitcnt vmcnt({12-4*rr})")
        for b in (R, I):
            for x in range(4):
                k(f"v_alignbyte_b32 v{b+6*rr+x}, v{b+6*rr+x+1}, v{b+6*rr+x}, v7")
    k.stamp(5)
    O = 56
    for e in range(8):
        o = O + 4 * e
        for rr in range(4):
            k(f"v_perm_b32 v{o+rr}, v{I+6*rr+(e>>1)}, v{R+6*rr+(e>>1)}, s{36+(e&1)}")
        k(f"buffer_store_dwordx4 {q4(o)}, v6, s[20:23], s35 offen")
        if e < 7:
            k(f"s_add_u32 s35, s35, {CP}")

def job_filter512(k, sidx, sync=None):
    k(f"s_load_dwordx4 s[4:7], s[0:1], {KA_WR}")
    k(f"s_lshr_b32 s30, s{sidx}, 4")
    k("s_lshl_b32 s30, s30, 4")
    k(f"s_bfe_u32 s31, s{sidx}, 0x10003")
    k("s_lshl_b32 s31, s31, 5")
    k("s_add_u32 s30, s30, s31")
    k(f"s_and_b32 s31, s{sidx}, 7")
    k("s_lshl_b32 s31, s31, 8")
    k("s_add_u32 s30, s30, s31")
    k("s_mul_i32 s30, s30, 1026")
    k("s_add_u32 s30, s30, 1024")
    k("v_and_b32 v3, 3, v2")
    k("v_lshrrev_b32 v4, 2, v2")
    k("v_lshl_add_u32 v3, v3, 6, v4")
    k("v_mul_u32_u24 v3, 1026, v3")
    k(f"s_lshl_b32 s31, s{sidx}, 8")
    k(f"s_add_u32 s31, s31, {WT + 512*CP}")
    k("v_lshlrev_b32 v4, 2, v2")
    k("s_waitcnt lgkmcnt(0)")
    srd(k, 12, 4, S * NCOL * 2)
    srd(k, 16, 6, S * NCOL * 2)
    if sync: sync()
    k(f"buffer_load_ushort v8, v3, s[12:15], s30 offen")
    k(f"buffer_load_ushort v9, v3, s[16:19], s30 offen")
    if sync: sync(2)
    k("s_waitcnt vmcnt(0)")
    k(f"v_lshl_or_b32 v8, v9, 16, v8")
    k("buffer_store_dword v8, v4, s[20:23], s31 offen")

def job_prefetch(k, sidx, ka_off, nbytes, per_wave_kb, sync=None):
    k(f"s_load_dwordx2 s[4:5], s[0:1], {ka_off}")
    k(f"s_mul_i32 s30, s{sidx}, {per_wave_kb*1024}")
    k("v_lshlrev_b32 v3, 4, v2")
    k("s_waitcnt lgkmcnt(0)")
    srd(k, 12, 4, nbytes)
    if sync: sync()
    for j in range(per_wave_kb):
        if j and j % 4 == 0:
            k("s_add_u32 s30, s30, 4096")
        k(f"buffer_load_dwordx4 {q4(8+4*(j%16))}, v3, s[12:15], s30 offen offset:{(j%4)*1024}")
    if sync: sync(2)

def side_waves(k, lanes, lend, kidx=None, nbar=2):
    sync = lambda n=1: k("s_barrier") if n <= nbar else None
    for fw, nw, jobs in lanes:
        nxt_lane = k.newlabel("lane")
        k(f"s_cmp_ge_u32 s3, {fw + nw}")
        k(f"s_cbranch_scc1 {nxt_lane}")
        k(f"s_cmp_lt_u32 s3, {fw}")
        k(f"s_cbranch_scc1 {lend}")
        k(f"s_mul_i32 s50, s2, {nw}")
        k("s_add_u32 s50, s50, s3")
        k(f"s_sub_u32 s50, s50, {fw}")
        for n, fn in jobs:
            nxt = k.newlabel("job")
            k(f"s_cmp_ge_u32 s50, {n}")
            k(f"s_cbranch_scc1 {nxt}")
            fn(k, 50, sync)
            if Kernel.STAMPS and kidx is not None:
                sv = k.nstamps
                k.stamp(1)
                k("s_waitcnt vmcnt(0)")
                k.stamp(2)
                k.nstamps = 3
                k.stamp_flush(kidx)
                k.nstamps = sv
            k("s_endpgm")
            k.label(nxt)
            k(f"s_sub_u32 s50, s50, {n}")
        k(f"s_branch {lend}")
        k.label(nxt_lane)
    k(f"s_branch {lend}")

def self_prefetch(k, nkb=8):
    lab = k.newlabel("pc")
    k("s_getpc_b64 s[24:25]")
    k.label(lab)
    k(f"s_sub_u32 s24, s24, {lab}-{k.name}")
    k("s_subb_u32 s25, s25, 0")
    k(f"s_mov_b32 s26, code_end-{k.name}")
    k("s_mov_b32 s27, 0x20000")
    k("s_lshr_b32 s28, s2, 1")
    k("s_and_b32 s28, s28, -4")
    k("s_add_u32 s28, s28, s3")
    k(f"s_and_b32 s28, s28, {nkb-1}")
    k("s_lshl_b32 s28, s28, 10")
    k("v_lshlrev_b32 v120, 4, v2")
    k("buffer_load_dwordx4 v[124:127], v120, s[24:27], s28 offen")
```

```python
from asmlib import *
from layout import *
from jobs import *

LOG2E = 1.4426950408889634
K0_NA, K0_NB = 32 * KS0, 256
K0_NP = 128
PF_KB = 2
K0_NWG = K0_NA + K0_NB + K0_NP

def gen_k0():
    k = Kernel("k0_kernel")
    LB, LP, LEND = k.newlabel("B"), k.newlabel("P"), k.newlabel("end")
    def fin():
        k.stamp(3)
        if Kernel.STAMPS:
            k("s_waitcnt vmcnt(0)")
        k.stamp(4)
        k.stamp_flush(0)
    k(f"s_cmp_ge_u32 s2, {K0_NWG}")
    k(f"s_cbranch_scc1 {LEND}")
    k.stamp(0)
    k(f"s_load_dwordx2 s[8:9], s[0:1], {KA_WS}")
    k(f"s_load_dwordx4 s[4:7], s[0:1], {KA_C}")
    k(f"s_load_dwordx2 s[24:25], s[0:1], {KA_X}")
    k("v_lshrrev_b32 v1, 6, v0")
    k("v_and_b32 v2, 63, v0")
    k("v_readfirstlane_b32 s3, v1")
    k(f"s_cmp_lt_u32 s2, {K0_NP}")
    k(f"s_cbranch_scc1 {LP}")
    k(f"s_sub_u32 s2, s2, {K0_NP}")
    k(f"s_cmp_ge_u32 s2, {K0_NA}")
    k(f"s_cbranch_scc1 {LB}")
    NJ = 1024 // KS0 // 32
    k(f"s_lshr_b32 s31, s2, {KS0.bit_length()-1}")
    k(f"s_and_b32 s30, s2, {KS0-1}")
    k("v_and_b32 v3, 7, v0")
    k("v_lshrrev_b32 v4, 3, v0")
    k(f"v_mul_u32_u24 v5, {NJ*12288}, v4")
    k("v_lshl_add_u32 v5, v3, 4, v5")
    k("v_lshlrev_b32 v6, 4, v4")
    k(f"s_mul_i32 s33, s30, {32*NJ*12288}")
    k("s_lshl_b32 s34, s31, 7")
    k("s_add_u32 s33, s33, s34")
    k("s_lshl_b32 s32, s30, 9")
    k("s_waitcnt lgkmcnt(0)")
    srd(k, 12, 6, 1024 * 12288)
    srd(k, 16, 4, 2048)
    srd(k, 20, 8, WS_END)
    k.stamp(1)
    k("buffer_load_dwordx4 v[8:11], v6, s[16:19], s32 offen")
    W = 48
    for j in range(NJ):
        k(f"buffer_load_dwordx4 {q4(W+4*j)}, v5, s[12:15], s33 offen nt")
        if j < NJ - 1:
            k(f"s_add_u32 s33, s33, 12288")
    k(f"s_waitcnt vmcnt({NJ})")
    C, E = 16, 24
    for i in range(4):
        k(f"v_lshlrev_b32 v{C+2*i}, 16, v{8+i}")
        k(f"v_and_b32 v{C+2*i+1}, 0xffff0000, v{8+i}")
    for j in range(8):
        k(f"v_mul_f32 v{E+j}, {f32hex(-LOG2E)}, v{C+j}")
    for j in range(8):
        k(f"v_exp_f32 v{E+j}, v{E+j}")
    for j in range(8):
        k(f"v_add_f32 v{E+j}, 1.0, v{E+j}")
    for j in range(8):
        k(f"v_rcp_f32 v{E+j}, v{E+j}")
    for j in range(0, 8, 2):
        k(f"v_pk_mul_f32 {q2(C+j)}, {q2(C+j)}, {q2(E+j)}")
    for j in range(0, 8, 2):
        k(f"v_cvt_pk_bf16_f32 v{E+j}, v{C+j}, v{C+j+1}")
    for j in range(0, 8, 2):
        k(f"v_lshlrev_b32 v{C+j}, 16, v{E+j}")
        k(f"v_and_b32 v{C+j+1}, 0xffff0000, v{E+j}")
    A = 40
    for j in range(NJ):
        k(f"s_waitcnt vmcnt({NJ-1-j})")
        for i in range(4):
            k(f"v_lshlrev_b32 v{32+2*i}, 16, v{W+4*j+i}")
            k(f"v_and_b32 v{33+2*i}, 0xffff0000, v{W+4*j+i}")
        sp = C + (j & ~1)
        sel = "op_sel:[0,1,0] op_sel_hi:[1,1,1]" if j & 1 else "op_sel_hi:[1,0,1]"
        for i in range(4):
            if j == 0:
                k(f"v_pk_mul_f32 {q2(A+2*i)}, {q2(32+2*i)}, {q2(sp)} op_sel_hi:[1,0]")
            else:
                k(f"v_pk_fma_f32 {q2(A+2*i)}, {q2(32+2*i)}, {q2(sp)}, {q2(A+2*i)} {sel}")
    k.stamp(2)
    for i in range(4):
        k(f"v_permlane32_swap_b32 v{A+i}, v{A+4+i}")
    for i in range(0, 4, 2):
        k(f"v_pk_add_f32 {q2(A+i)}, {q2(A+i)}, {q2(A+4+i)}")
    for i in range(2):
        k(f"v_permlane16_swap_b32 v{A+i}, v{A+2+i}")
    k(f"v_pk_add_f32 {q2(A)}, {q2(A)}, {q2(A+2)}")
    for i in range(2):
        k(f"v_add_f32_dpp v{A+i}, v{A+i}, v{A+i} row_ror:8 row_mask:0xf bank_mask:0xf")
    k("v_lshlrev_b32 v7, 5, v3")
    k("v_lshrrev_b32 v8, 4, v2")
    k("v_lshl_add_u32 v7, v8, 3, v7")
    k("v_lshl_add_u32 v7, v1, 8, v7")
    k(f"ds_write_b64 v7, v[{A}:{A+1}]")
    LNS = k.newlabel("nosilu")
    k("s_cmp_lg_u32 s31, 0")
    k(f"s_cbranch_scc1 {LNS}")
    k("v_lshlrev_b32 v6, 5, v4")
    k("s_lshl_b32 s32, s30, 10")
    k(f"s_add_u32 s32, s32, {SILU}")
    k(f"buffer_store_dwordx4 {q4(C)}, v6, s[20:23], s32 offen")
    k(f"buffer_store_dwordx4 {q4(C+4)}, v6, s[20:23], s32 offen offset:16")
    k.label(LNS)
    k("s_waitcnt lgkmcnt(0)")
    k("s_barrier")
    k("s_cmp_lg_u32 s3, 0")
    k(f"s_cbranch_scc1 {LEND}")
    k("v_lshlrev_b32 v7, 2, v2")
    k("ds_read2st64_b32 v[8:9], v7 offset0:0 offset1:1")
    k("ds_read2st64_b32 v[10:11], v7 offset0:2 offset1:3")
    k("s_mul_i32 s34, s30, 24576")
    k("s_lshl_b32 s35, s31, 8")
    k("s_add_u32 s34, s34, s35")
    k("s_waitcnt lgkmcnt(0)")
    k("v_add_f32 v8, v8, v9")
    k("v_add_f32 v10, v10, v11")
    k("v_add_f32 v8, v8, v10")
    k("buffer_store_dword v8, v7, s[20:23], s34 offen")
    fin()
    k("s_endpgm")
    k.label(LB)
    k(f"s_sub_u32 s29, s2, {K0_NA}")
    k("s_lshr_b32 s30, s3, 1")
    k("s_lshl_b32 s30, s30, 4")
    k("s_and_b32 s31, s3, 1")
    k("s_lshl_b32 s31, s31, 1")
    k("s_add_u32 s30, s30, s31")
    k("s_bfe_u32 s31, s29, 0x20004")
    k("s_lshl_b32 s31, s31, 2")
    k("s_add_u32 s30, s30, s31")
    k("s_lshl_b32 s30, s30, 6")
    k("s_lshr_b32 s31, s29, 6")
    k("s_lshl_b32 s31, s31, 4")
    k("s_add_u32 s30, s30, s31")
    k("s_and_b32 s31, s29, 15")
    k("s_add_u32 s30, s30, s31")
    k("s_lshl_b32 s30, s30, 11")
    k("v_and_b32 v3, 1, v2")
    k("v_lshlrev_b32 v3, 17, v3")
    k("v_bfe_u32 v4, v2, 1, 3")
    k("v_lshl_add_u32 v3, v4, 3, v3")
    k("v_lshrrev_b32 v4, 4, v2")
    k("v_lshl_add_u32 v3, v4, 6, v3")
    k("s_waitcnt lgkmcnt(0)")
    srd(k, 12, 24, S * D * 2)
    srd(k, 20, 8, WS_END)
    k.stamp(1)
    for j in range(8):
        k(f"buffer_load_dwordx2 v[{8+2*j}:{9+2*j}], v3, s[12:15], s30 offen offset:{256*j}")
    X = 24
    for j in range(8):
        k(f"s_waitcnt vmcnt({7-j})")
        k(f"v_lshlrev_b32 v{X+4*j}, 16, v{8+2*j}")
        k(f"v_and_b32 v{X+4*j+1}, 0xffff0000, v{8+2*j}")
        k(f"v_lshlrev_b32 v{X+4*j+2}, 16, v{9+2*j}")
        k(f"v_and_b32 v{X+4*j+3}, 0xffff0000, v{9+2*j}")
        if j == 0:
            k(f"v_pk_add_f32 v[56:57], v[{X}:{X+1}], v[{X+2}:{X+3}]")
            k(f"v_pk_mul_f32 v[58:59], v[{X}:{X+1}], v[{X}:{X+1}]")
            k(f"v_pk_mul_f32 v[60:61], v[{X+2}:{X+3}], v[{X+2}:{X+3}]")
        else:
            b = X + 4 * j
            k(f"v_pk_add_f32 v[56:57], v[56:57], v[{b}:{b+1}]")
            k(f"v_pk_fma_f32 v[58:59], v[{b}:{b+1}], v[{b}:{b+1}], v[58:59]")
            k(f"v_pk_add_f32 v[56:57], v[56:57], v[{b+2}:{b+3}]")
            k(f"v_pk_fma_f32 v[60:61], v[{b+2}:{b+3}], v[{b+2}:{b+3}], v[60:61]")
    k.stamp(2)
    k("v_pk_add_f32 v[58:59], v[58:59], v[60:61]")
    k("v_add_f32 v56, v56, v57")
    k("v_add_f32 v58, v58, v59")
    k("v_permlane32_swap_b32 v56, v58")
    k("v_add_f32 v56, v56, v58")
    k("v_mov_b32 v57, v56")
    k("v_permlane16_swap_b32 v57, v56")
    k("v_add_f32 v56, v56, v57")
    k("v_add_f32_dpp v56, v56, v56 quad_perm:[2,3,0,1] row_mask:0xf bank_mask:0xf")
    k("v_add_f32_dpp v56, v56, v56 row_ror:4 row_mask:0xf bank_mask:0xf")
    k("v_add_f32_dpp v56, v56, v56 row_ror:8 row_mask:0xf bank_mask:0xf")
    k("v_mov_b32 v57, v56")
    k("v_permlane32_swap_b32 v57, v56")
    ln_stats(k, 57, 56, 60, 58)
    for j in range(8):
        for h in range(2):
            b = X + 4 * j + 2 * h
            k(f"v_pk_fma_f32 v[{b}:{b+1}], v[{b}:{b+1}], v[60:61], v[60:61] op_sel:[0,0,1] op_sel_hi:[1,0,1]")
    k("s_lshl_b32 s31, s29, 2")
    k("s_add_u32 s31, s31, s3")
    k("s_lshl_b32 s31, s31, 12")
    k(f"s_add_u32 s31, s31, {XH}")
    k("v_lshlrev_b32 v3, 4, v2")
    for t in range(4):
        for jj in range(4):
            k(f"v_cvt_pk_bf16_f32 v{8+4*t+jj}, v{X+8*jj+t}, v{X+8*jj+4+t}")
        k(f"buffer_store_dwordx4 v[{8+4*t}:{11+4*t}], v3, s[20:23], s31 offen offset:{1024*t}")
    fin()
    k("s_endpgm")
    k.label(LP)
    lab = k.newlabel("pc")
    k("s_getpc_b64 s[12:13]")
    k.label(lab)
    k(f"s_sub_u32 s12, s12, {lab}-k0_kernel")
    k("s_subb_u32 s13, s13, 0")
    k("s_mov_b32 s14, code_end-k0_kernel")
    k("s_mov_b32 s15, 0x20000")
    k("s_lshr_b32 s30, s2, 3")
    k("s_lshl_b32 s30, s30, 2")
    k("s_add_u32 s30, s30, s3")
    k(f"s_mul_i32 s30, s30, {PF_KB*1024}")
    k("v_lshlrev_b32 v3, 4, v2")
    for j in range(PF_KB):
        k(f"buffer_load_dwordx4 {q4(8+4*j)}, v3, s[12:15], s30 offen offset:{j*1024}")
    k("s_waitcnt lgkmcnt(0)")
    srd(k, 20, 8, WS_END)
    LF = k.newlabel("F")
    k("s_cmp_ge_u32 s2, 2")
    k(f"s_cbranch_scc1 {LF}")
    k(f"v_mov_b32 v24, 0")
    k("v_lshlrev_b32 v4, 7, v0")
    k("s_lshl_b32 s31, s2, 15")
    k(f"s_add_u32 s31, s31, {FLG}")
    k("buffer_store_dword v24, v4, s[20:23], s31 offen")
    k("s_endpgm")
    k.label(LF)
    k("s_sub_u32 s50, s2, 8")
    k("s_cmp_ge_u32 s50, 32")
    k(f"s_cbranch_scc1 {LEND}")
    k("s_cmp_lg_u32 s3, 0")
    k(f"s_cbranch_scc1 {LEND}")
    job_filter512(k, 50)
    k.label(LEND)
    k("s_endpgm")
    return k, dict(grid=K0_NWG, block=256, lds=1024)


def ln_stats(k, vsum, vsq, out, tmp):
    k(f"v_mul_f32 v{vsum}, {f32hex(1/1024)}, v{vsum}")
    k(f"v_mul_f32 v{tmp}, v{vsum}, v{vsum}")
    k(f"v_mul_f32 v{vsq}, {f32hex(1/1024)}, v{vsq}")
    k(f"v_sub_f32 v{vsq}, v{vsq}, v{tmp}")
    k(f"v_max_f32 v{vsq}, 0, v{vsq}")
    k(f"v_cvt_pk_bf16_f32 v{tmp}, v{vsum}, v{vsq}")
    k(f"v_and_b32 v{vsq}, 0xffff0000, v{tmp}")
    k(f"v_lshlrev_b32 v{vsum}, 16, v{tmp}")
    k(f"v_add_f32 v{vsq}, {f32hex(1e-5)}, v{vsq}")
    round_bf16(k, vsq, vsq)
    k(f"v_sqrt_f32 v{vsq}, v{vsq}")
    round_bf16(k, vsq, vsq)
    k(f"v_rcp_f32 v{out}, v{vsq}")
    k(f"v_mul_f32 v{out+1}, v{vsum}, v{out}")
    k(f"v_sub_f32 v{out+1}, 0, v{out+1}")
```

```python
KA_X, KA_WR, KA_WI, KA_BX, KA_W1, KA_B1, KA_W2, KA_B2, KA_C, KA_WMOD, KA_OUT, KA_DBG, KA_WS = [8 * i for i in range(13)]

S, D, F = 2048, 1024, 3584
NCOL = 513

WS_BYTES = 268435456
MODP = 0x0000000
MODF = 0x0040000
SILU = 0x0050000
XH = 0x0100000
WT = 0x0500000
F1 = 0x0902000
HH = 0x0100000
F2 = 0x0F00000
X1 = 0x1400000
Y3 = 0x1800000
WS_END = 0x2C00000
CP = 8192
KS0 = 4
FLG = 0x0060000
FLS = 128
FL_A, FL_B = FLG, FLG + 256 * FLS
XCH = 0x1C00000
WS_END = 0x2400000
```

```python
import re
import struct


def v(i, n=1):
    return f"v{i}" if n == 1 else f"v[{i}:{i + n - 1}]"


def a(i, n=1):
    return f"a{i}" if n == 1 else f"a[{i}:{i + n - 1}]"


def s(i, n=1):
    return f"s{i}" if n == 1 else f"s[{i}:{i + n - 1}]"


def f32hex(x):
    return "0x%08x" % struct.unpack("<I", struct.pack("<f", x))[0]


def bf16bits(x):
    u = struct.unpack("<I", struct.pack("<f", x))[0]
    u = (u + 0x7FFF + ((u >> 16) & 1)) >> 16
    return u & 0xFFFF


_REG_RE = re.compile(r"\b([vas])(\d+)\b|\b([vas])\[(\d+):(\d+)\]|\b(vcc|exec|m0|scc)(_lo|_hi)?\b")

TRANS = ("v_exp_f32", "v_log_f32", "v_rcp_f32", "v_rsq_f32", "v_sqrt_f32", "v_sin_f32", "v_cos_f32",
         "v_rcp_iflag_f32")


def regs_of(tok):
    out = set()
    for m in _REG_RE.finditer(tok):
        if m.group(1):
            out.add((m.group(1), int(m.group(2))))
        elif m.group(3):
            for i in range(int(m.group(4)), int(m.group(5)) + 1):
                out.add((m.group(3), i))
        else:
            out.add((m.group(6), 0))
    return out


def split_ops(rest):
    ops, depth, cur = [], 0, ""
    for ch in rest:
        if ch in "[(":
            depth += 1
        if ch in "])":
            depth -= 1
        if ch == "," and depth == 0:
            ops.append(cur.strip())
            cur = ""
        else:
            cur += ch
    if cur.strip():
        ops.append(cur.strip())
    return ops


class Ins:
    __slots__ = ("text", "op", "cls", "rd", "wr", "srcc", "srcab", "passes", "dpp", "ws", "target", "store_data",
                 "lds_dma", "sreads")

    def __init__(self, text):
        self.text = text
        t = text.split(";")[0].strip()
        parts = t.split(None, 1)
        op = parts[0]
        rest = parts[1] if len(parts) > 1 else ""
        self.op = op
        ops = split_ops(rest)
        if ops:
            last = ops[-1].split()
            mods = " ".join(last[1:])
            ops[-1] = last[0] if last else ""
        else:
            mods = ""
        self.rd, self.wr = set(), set()
        self.srcc, self.srcab = set(), set()
        self.passes = 0
        self.dpp = False
        self.ws = 1
        self.target = None
        self.store_data = set()
        self.lds_dma = False
        base = op.replace("_e32", "").replace("_e64", "").replace("_dpp", "").replace("_sdwa", "")
        if op.startswith("v_mfma"):
            self.cls = "mfma"
            self.wr = regs_of(ops[0])
            self.srcab = regs_of(ops[1]) | regs_of(ops[2])
            self.srcc = regs_of(ops[3])
            self.rd = self.srcab | self.srcc
            if "32x32x16" in op or "32x32x8" in op:
                self.passes = 8
            elif "16x16x32" in op or "16x16x16" in op:
                self.passes = 4
            else:
                raise ValueError("unknown mfma " + op)
        elif op.startswith("v_"):
            self.cls = "valu"
            self.dpp = "_dpp" in op or "quad_perm" in mods or "row_" in mods
            if base.startswith("v_permlane") and "swap" in base:
                self.wr = regs_of(ops[0]) | regs_of(ops[1])
                self.rd = set(self.wr)
            elif base.startswith("v_cmp"):
                self.wr = regs_of(ops[0])
                for o in ops[1:]:
                    self.rd |= regs_of(o)
                if base.startswith("v_cmpx"):
                    self.wr.add(("exec", 0))
            elif base in ("v_add_co_u32", "v_sub_co_u32", "v_addc_co_u32", "v_subb_co_u32", "v_subrev_co_u32",
                          "v_mad_u64_u32", "v_div_scale_f32"):
                self.wr = regs_of(ops[0]) | regs_of(ops[1])
                for o in ops[2:]:
                    self.rd |= regs_of(o)
            else:
                self.wr = regs_of(ops[0])
                for o in ops[1:]:
                    self.rd |= regs_of(o)
                if base in ("v_fmac_f32", "v_dot2c_f32_bf16", "v_pk_fmac_f16", "v_writelane_b32") or self.dpp \
                        or "dst_unused:UNUSED_PRESERVE" in mods:
                    self.rd |= self.wr
                if base == "v_cndmask_b32" and len(ops) == 3:
                    self.rd.add(("vcc", 0))
        elif op.startswith("buffer_") or op.startswith("global_") or op.startswith("flat_"):
            self.cls = "vmem"
            allmods = mods + " " + (ops[-1] if ops else "")
            is_lds = bool(re.search(r"\blds\b", mods)) or "load_lds" in op
            self.lds_dma = is_lds
            if op in ("buffer_wbl2", "buffer_inv"):
                pass
            elif "load" in op and not is_lds:
                self.wr = regs_of(ops[0])
                for o in ops[1:]:
                    self.rd |= regs_of(o)
                if "d16" in op:
                    self.rd |= self.wr
            elif is_lds:
                for o in ops:
                    self.rd |= regs_of(o)
                self.rd.add(("m0", 0))
            elif "store" in op:
                for o in ops:
                    self.rd |= regs_of(o)
                data = ops[0] if op.startswith("buffer_") else ops[1]
                if "x3" in op or "x4" in op:
                    self.store_data = regs_of(data)
            elif "atomic" in op:
                for o in ops:
                    self.rd |= regs_of(o)
                if re.search(r"\bsc0\b", mods):
                    self.wr = regs_of(ops[0])
            else:
                raise ValueError("unknown vmem " + text)
        elif op.startswith("ds_"):
            self.cls = "ds"
            if "read" in op or "bpermute" in op or "permute" in op or "swizzle" in op or "_rtn" in op:
                self.wr = regs_of(ops[0])
                for o in ops[1:]:
                    self.rd |= regs_of(o)
            else:
                for o in ops:
                    self.rd |= regs_of(o)
        elif op == "s_nop":
            self.cls = "nop"
            self.ws = int(ops[0], 0) + 1
        elif op.startswith("s_cbranch") or op == "s_branch":
            self.cls = "branch"
            self.target = ops[0]
        elif op in ("s_waitcnt", "s_barrier", "s_endpgm", "s_setprio", "s_sleep"):
            self.cls = "misc"
        elif op.startswith("s_load") or op.startswith("s_buffer_load") or op in ("s_memtime", "s_memrealtime") \
                or op.startswith("s_atomic"):
            self.cls = "smem"
            self.wr = regs_of(ops[0])
            for o in ops[1:]:
                self.rd |= regs_of(o)
        elif op.startswith("s_"):
            self.cls = "salu"
            if op.startswith("s_cmp") or op.startswith("s_bitcmp"):
                for o in ops:
                    self.rd |= regs_of(o)
            else:
                self.wr = regs_of(ops[0])
                for o in ops[1:]:
                    self.rd |= regs_of(o)
                if "saveexec" in op:
                    self.wr.add(("exec", 0))
        else:
            raise ValueError("unknown instruction " + text)
        self.sreads = {r for r in self.rd if r[0] in ("s", "vcc")}


def _vec(rs):
    return {r for r in rs if r[0] in ("v", "a")}


def _sc(rs):
    return {r for r in rs if r[0] in ("s", "vcc")}


def need_between(p, c):
    n = 0
    base_c = c.op.replace("_e32", "").replace("_e64", "")
    if p.cls == "valu":
        if c.cls == "mfma" and p.op.startswith("v_pk_") and ("op_sel" in p.text or "neg_" in p.text):
            n = max(n, 2)
        wv = _vec(p.wr)
        ws_ = _sc(p.wr)
        if wv:
            if c.cls == "mfma" and wv & c.rd:
                n = max(n, 2)
            if c.cls == "valu":
                if c.dpp and wv & c.rd:
                    n = max(n, 2)
                if base_c.startswith("v_permlane") and wv & c.rd:
                    n = max(n, 2)
                if base_c in ("v_readlane_b32", "v_readfirstlane_b32") and wv & c.rd:
                    n = max(n, 1)
                pb = p.op.replace("_e32", "").replace("_e64", "")
                if pb in TRANS and wv & c.rd:
                    n = max(n, 1)
                if ("dst_sel:WORD" in p.text or "dst_sel:BYTE" in p.text) and wv & (c.rd | c.wr):
                    n = max(n, 1)
                if pb.startswith("v_dot2") and wv & (c.rd | c.wr):
                    cb = base_c
                    if cb != pb:
                        n = max(n, 3)
                    else:
                        ops = split_ops(c.text.split(";")[0].split(None, 1)[1])
                        ab = set()
                        for o in ops[1:3]:
                            ab |= regs_of(o)
                        if wv & ab:
                            n = max(n, 3)
            if c.cls in ("vmem", "ds") and p.op.startswith("v_dot2") and wv & c.rd:
                n = max(n, 3)
        if ws_:
            if c.cls == "valu" and ws_ & c.rd:
                n = max(n, 2)
                if base_c in ("v_readlane_b32", "v_writelane_b32"):
                    n = max(n, 4)
            if c.cls == "mfma" and ws_ & c.rd:
                n = max(n, 2)
            if c.cls == "vmem" and ws_ & c.rd:
                n = max(n, 5)
            if c.cls in ("salu", "smem") and ws_ & c.rd:
                n = max(n, 1)
            if c.cls == "branch" and ("vcc", 0) in ws_ and "vcc" in c.op:
                n = max(n, 5)
        if ("exec", 0) in p.wr:
            if c.cls in ("valu", "mfma"):
                n = max(n, 5)
    elif p.cls == "mfma":
        big = {4: 8, 8: 12}[p.passes]
        ovl = {4: 6, 8: 10}[p.passes]
        war = {4: 3, 8: 7}[p.passes]
        if c.cls == "mfma":
            if p.wr & c.srcab:
                n = max(n, big)
            if p.wr & c.srcc:
                if not (p.wr == c.srcc and p.passes == c.passes):
                    n = max(n, ovl)
            elif p.wr & c.wr:
                n = max(n, ovl)
        elif c.cls in ("valu", "vmem", "ds"):
            if p.wr & (c.rd | c.wr):
                n = max(n, big)
            if c.cls == "valu" and p.srcc & c.wr:
                n = max(n, war)
            if c.cls in ("vmem", "ds") and p.srcc & c.wr:
                n = max(n, war)
    elif p.cls == "vmem":
        if p.store_data and (p.store_data & c.wr):
            n = max(n, 2 if c.cls == "valu" else 1)
    elif p.cls == "salu":
        if ("m0", 0) in p.wr and (c.lds_dma or "addtid" in c.op or c.op.startswith("s_movrel")):
            n = max(n, 1)
    return n


MAXWIN = 14


class Kernel:
    def __init__(self, name):
        self.name = name
        self.items = []
        self._uid = 0

    def __call__(self, text):
        for line in text.split("\n"):
            line = line.strip()
            if not line:
                continue
            if line.startswith(";"):
                self.items.append(("r", "    " + line))
            else:
                self.items.append(("i", Ins(line)))

    def label(self, name):
        self.items.append(("l", name))

    def newlabel(self, stem="L"):
        self._uid += 1
        return f"{self.name}_{stem}{self._uid}"

    STAMPS = False
    STAMP_BASE = 0x4000000

    def stamp(self, i, cyc=False):
        if not Kernel.STAMPS:
            return
        self(f"{'s_memtime' if cyc else 's_memrealtime'} s[{70+2*i}:{71+2*i}]")
        self("s_waitcnt lgkmcnt(0)")
        self.nstamps = max(getattr(self, "nstamps", 0), i + 1)

    def stamp_flush(self, kidx, srd=20):
        if not Kernel.STAMPS:
            return
        n = self.nstamps
        if Kernel.DBG:
            sel = {0: (0, 200, [0, 4], 0), 1: (1, 5, [0, 5, 8], 2), 2: (2, 5, [0, 4, 8], 5), 3: (3, 5, [0, 2, 5, 6, 8, 9, 13], 8)}
            if kidx not in sel:
                return
            launch, wg, idx, slot = sel[kidx]
            L = self.newlabel("dbg")
            self(f"s_cmp_lg_u32 s2, {wg}")
            self(f"s_cbranch_scc1 {L}")
            self(f"s_cmp_lg_u32 s3, 0")
            self(f"s_cbranch_scc1 {L}")
            self("s_load_dwordx2 s[24:25], s[0:1], 88")
            self("s_waitcnt lgkmcnt(0)")
            self(f"s_sub_u32 s24, s24, {launch*512}")
            self("s_subb_u32 s25, s25, 0")
            self("s_mov_b32 s26, 256")
            self("s_mov_b32 s27, 0x20000")
            self("s_mov_b64 exec, 1")
            for j, i in enumerate(idx):
                self(f"v_mov_b32 v1, s{70+2*i}")
                self(f"buffer_store_dword v1, off, s[24:27], 0 offset:{4*(slot+j)}")
            self.label(L)
            return
        self("s_mov_b64 exec, 1")
        self(f"s_lshl_b32 s98, s2, 3")
        self(f"s_add_u32 s98, s98, s3")
        self(f"s_lshl_b32 s98, s98, 6")
        self(f"s_add_u32 s98, s98, {Kernel.STAMP_BASE + kidx * 2048 * 8 * 64}")
        self(f"s_mov_b32 s{srd+2}, 0x10000000")
        self("v_mov_b32 v0, 0")
        for i in range(n):
            self(f"v_mov_b32 v1, s{70+2*i}")
            self(f"buffer_store_dword v1, v0, s[{srd}:{srd+3}], s98 offen offset:{4*i}")

    DBG = False
    def dbgstamp(self, launch, slot, wg=0):
        if not Kernel.DBG:
            return
        L = self.newlabel("dbg")
        self(f"s_cmp_lg_u32 s2, {wg}")
        self(f"s_cbranch_scc1 {L}")
        self(f"s_cmp_lg_u32 s3, 0")
        self(f"s_cbranch_scc1 {L}")
        self("s_load_dwordx2 s[92:93], s[0:1], 88")
        self("s_memrealtime s[90:91]")
        self("s_waitcnt lgkmcnt(0)")
        self(f"s_sub_u32 s92, s92, {launch*512}")
        self("s_subb_u32 s93, s93, 0")
        self("s_mov_b32 s94, 256")
        self("s_mov_b32 s95, 0x20000")
        self("s_mov_b64 s[96:97], exec")
        self("s_mov_b64 exec, 1")
        self("v_mov_b32 v1, s90")
        self(f"buffer_store_dword v1, off, s[92:95], 0 offset:{4*slot}")
        self("s_mov_b64 exec, s[96:97]")
        self.label(L)

    def raw(self, text):
        self.items.append(("r", text))

    def finish(self):
        items = self.items
        i = 0
        n_ins = 0
        while i < len(items):
            kind, it = items[i]
            if kind != "i" or it.cls in ("nop", "misc"):
                i += 1
                continue
            need = self._need(items, i)
            if need > 0:
                while need > 0:
                    k = min(need, 16)
                    items.insert(i, ("i", Ins(f"s_nop {k - 1}")))
                    i += 1
                    need -= k
                    n_ins += 1
            i += 1
        out = []
        for kind, it in items:
            if kind == "i":
                out.append("    " + it.text)
            elif kind == "l":
                out.append(it + ":")
            else:
                out.append(it)
        self.n_nops = n_ins
        return "\n".join(out) + "\n"

    def _need(self, items, idx):
        c = items[idx][1]
        if not hasattr(self, "_br") or self._brlen != len(items):
            self._br = {}
            for j, (k, it) in enumerate(items):
                if k == "i" and it.cls == "branch":
                    self._br.setdefault(it.target, []).append(j)
            self._brlen = len(items)
        best = 0
        stack = [(idx - 1, 0)]
        seen = set()
        while stack:
            j, dist = stack.pop()
            while j >= 0 and dist < MAXWIN:
                if (j, dist) in seen:
                    break
                seen.add((j, dist))
                k, it = items[j]
                if k == "l":
                    for b in self._br.get(it, []):
                        stack.append((b, dist))
                    j -= 1
                    continue
                if k == "r":
                    j -= 1
                    continue
                if it.op in ("s_branch", "s_endpgm") and j != idx - 1 + 1 and not self._arrived_by_branch(j, stack):
                    pass
                n = need_between(it, c)
                if n > dist:
                    best = max(best, n - dist)
                dist += it.ws
                pj = j - 1
                while pj >= 0 and items[pj][0] == "r":
                    pj -= 1
                if pj >= 0 and items[pj][0] == "i" and items[pj][1].op in ("s_branch", "s_endpgm"):
                    break
                j -= 1
        return best

    def _arrived_by_branch(self, j, stack):
        return False


def descriptor(name, vgprs, sgprs=102, accum=None, agprs=0, wg_y=False):
    accum = accum if accum is not None else ((vgprs + 3) // 4) * 4
    accum = max(4, min(256, accum))
    nfv = accum + agprs if agprs else vgprs
    t = f""".section .rodata,"a"
.p2align 6
.amdhsa_kernel {name}
  .amdhsa_next_free_vgpr {nfv}
  .amdhsa_next_free_sgpr {sgprs}
  .amdhsa_accum_offset {accum}
  .amdhsa_group_segment_fixed_size 0
  .amdhsa_kernarg_size 104
  .amdhsa_user_sgpr_count 2
  .amdhsa_user_sgpr_kernarg_segment_ptr 1
  .amdhsa_system_sgpr_workgroup_id_x 1
"""
    if wg_y:
        t += "  .amdhsa_system_sgpr_workgroup_id_y 1\n"
    t += "  .amdhsa_float_denorm_mode_32 3\n"
    t += ".end_amdhsa_kernel\n"
    return t


def kernel_text(k):
    body = k.finish()
    return f""".text
.globl {k.name}
.p2align 8
.type {k.name},@function
{k.name}:
{body}"""


def max_regs(k):
    mv = ms = ma = -1
    for kind, it in k.items:
        if kind != "i":
            continue
        for r in it.rd | it.wr:
            if r[0] == "v":
                mv = max(mv, r[1])
            elif r[0] == "s":
                ms = max(ms, r[1])
            elif r[0] == "a":
                ma = max(ma, r[1])
    return mv + 1, ms + 1, ma + 1
```

```python
import re
import struct


def v(i, n=1):
    return f"v{i}" if n == 1 else f"v[{i}:{i + n - 1}]"


def a(i, n=1):
    return f"a{i}" if n == 1 else f"a[{i}:{i + n - 1}]"


def s(i, n=1):
    return f"s{i}" if n == 1 else f"s[{i}:{i + n - 1}]"


def f32hex(x):
    return "0x%08x" % struct.unpack("<I", struct.pack("<f", x))[0]


def bf16bits(x):
    u = struct.unpack("<I", struct.pack("<f", x))[0]
    u = (u + 0x7FFF + ((u >> 16) & 1)) >> 16
    return u & 0xFFFF


_REG_RE = re.compile(r"\b([vas])(\d+)\b|\b([vas])\[(\d+):(\d+)\]|\b(vcc|exec|m0|scc)(_lo|_hi)?\b")

TRANS = ("v_exp_f32", "v_log_f32", "v_rcp_f32", "v_rsq_f32", "v_sqrt_f32", "v_sin_f32", "v_cos_f32",
         "v_rcp_iflag_f32")


def regs_of(tok):
    out = set()
    for m in _REG_RE.finditer(tok):
        if m.group(1):
            out.add((m.group(1), int(m.group(2))))
        elif m.group(3):
            for i in range(int(m.group(4)), int(m.group(5)) + 1):
                out.add((m.group(3), i))
        else:
            out.add((m.group(6), 0))
    return out


def split_ops(rest):
    ops, depth, cur = [], 0, ""
    for ch in rest:
        if ch in "[(":
            depth += 1
        if ch in "])":
            depth -= 1
        if ch == "," and depth == 0:
            ops.append(cur.strip())
            cur = ""
        else:
            cur += ch
    if cur.strip():
        ops.append(cur.strip())
    return ops


class Ins:
    __slots__ = ("text", "op", "cls", "rd", "wr", "srcc", "srcab", "passes", "dpp", "ws", "target", "store_data",
                 "lds_dma", "sreads")

    def __init__(self, text):
        self.text = text
        t = text.split(";")[0].strip()
        parts = t.split(None, 1)
        op = parts[0]
        rest = parts[1] if len(parts) > 1 else ""
        self.op = op
        ops = split_ops(rest)
        if ops:
            last = ops[-1].split()
            mods = " ".join(last[1:])
            ops[-1] = last[0] if last else ""
        else:
            mods = ""
        self.rd, self.wr = set(), set()
        self.srcc, self.srcab = set(), set()
        self.passes = 0
        self.dpp = False
        self.ws = 1
        self.target = None
        self.store_data = set()
        self.lds_dma = False
        base = op.replace("_e32", "").replace("_e64", "").replace("_dpp", "").replace("_sdwa", "")
        if op.startswith("v_mfma"):
            self.cls = "mfma"
            self.wr = regs_of(ops[0])
            self.srcab = regs_of(ops[1]) | regs_of(ops[2])
            self.srcc = regs_of(ops[3])
            self.rd = self.srcab | self.srcc
            if "32x32x16" in op or "32x32x8" in op:
                self.passes = 8
            elif "16x16x32" in op or "16x16x16" in op:
                self.passes = 4
            else:
                raise ValueError("unknown mfma " + op)
        elif op.startswith("v_"):
            self.cls = "valu"
            self.dpp = "_dpp" in op or "quad_perm" in mods or "row_" in mods
            if base.startswith("v_permlane") and "swap" in base:
                self.wr = regs_of(ops[0]) | regs_of(ops[1])
                self.rd = set(self.wr)
            elif base.startswith("v_cmp"):
                self.wr = regs_of(ops[0])
                for o in ops[1:]:
                    self.rd |= regs_of(o)
                if base.startswith("v_cmpx"):
                    self.wr.add(("exec", 0))
            elif base in ("v_add_co_u32", "v_sub_co_u32", "v_addc_co_u32", "v_subb_co_u32", "v_subrev_co_u32",
                          "v_mad_u64_u32", "v_div_scale_f32"):
                self.wr = regs_of(ops[0]) | regs_of(ops[1])
                for o in ops[2:]:
                    self.rd |= regs_of(o)
            else:
                self.wr = regs_of(ops[0])
                for o in ops[1:]:
                    self.rd |= regs_of(o)
                if base in ("v_fmac_f32", "v_dot2c_f32_bf16", "v_pk_fmac_f16", "v_writelane_b32") or self.dpp \
                        or "dst_unused:UNUSED_PRESERVE" in mods:
                    self.rd |= self.wr
                if base == "v_cndmask_b32" and len(ops) == 3:
                    self.rd.add(("vcc", 0))
        elif op.startswith("buffer_") or op.startswith("global_") or op.startswith("flat_"):
            self.cls = "vmem"
            allmods = mods + " " + (ops[-1] if ops else "")
            is_lds = bool(re.search(r"\blds\b", mods)) or "load_lds" in op
            self.lds_dma = is_lds
            if op in ("buffer_wbl2", "buffer_inv"):
                pass
            elif "load" in op and not is_lds:
                self.wr = regs_of(ops[0])
                for o in ops[1:]:
                    self.rd |= regs_of(o)
                if "d16" in op:
                    self.rd |= self.wr
            elif is_lds:
                for o in ops:
                    self.rd |= regs_of(o)
                self.rd.add(("m0", 0))
            elif "store" in op:
                for o in ops:
                    self.rd |= regs_of(o)
                data = ops[0] if op.startswith("buffer_") else ops[1]
                if "x3" in op or "x4" in op:
                    self.store_data = regs_of(data)
            elif "atomic" in op:
                for o in ops:
                    self.rd |= regs_of(o)
                if re.search(r"\bsc0\b", mods):
                    self.wr = regs_of(ops[0])
            else:
                raise ValueError("unknown vmem " + text)
        elif op.startswith("ds_"):
            self.cls = "ds"
            if "read" in op or "bpermute" in op or "permute" in op or "swizzle" in op or "_rtn" in op:
                self.wr = regs_of(ops[0])
                for o in ops[1:]:
                    self.rd |= regs_of(o)
            else:
                for o in ops:
                    self.rd |= regs_of(o)
        elif op == "s_nop":
            self.cls = "nop"
            self.ws = int(ops[0], 0) + 1
        elif op.startswith("s_cbranch") or op == "s_branch":
            self.cls = "branch"
            self.target = ops[0]
        elif op in ("s_waitcnt", "s_barrier", "s_endpgm", "s_setprio", "s_sleep"):
            self.cls = "misc"
        elif op.startswith("s_load") or op.startswith("s_buffer_load") or op in ("s_memtime", "s_memrealtime") \
                or op.startswith("s_atomic"):
            self.cls = "smem"
            self.wr = regs_of(ops[0])
            for o in ops[1:]:
                self.rd |= regs_of(o)
        elif op.startswith("s_"):
            self.cls = "salu"
            if op.startswith("s_cmp") or op.startswith("s_bitcmp"):
                for o in ops:
                    self.rd |= regs_of(o)
            else:
                self.wr = regs_of(ops[0])
                for o in ops[1:]:
                    self.rd |= regs_of(o)
                if "saveexec" in op:
                    self.wr.add(("exec", 0))
        else:
            raise ValueError("unknown instruction " + text)
        self.sreads = {r for r in self.rd if r[0] in ("s", "vcc")}


def _vec(rs):
    return {r for r in rs if r[0] in ("v", "a")}


def _sc(rs):
    return {r for r in rs if r[0] in ("s", "vcc")}


def need_between(p, c):
    n = 0
    base_c = c.op.replace("_e32", "").replace("_e64", "")
    if p.cls == "valu":
        if c.cls == "mfma" and p.op.startswith("v_pk_") and ("op_sel" in p.text or "neg_" in p.text):
            n = max(n, 2)
        wv = _vec(p.wr)
        ws_ = _sc(p.wr)
        if wv:
            if c.cls == "mfma" and wv & c.rd:
                n = max(n, 2)
            if c.cls == "valu":
                if c.dpp and wv & c.rd:
                    n = max(n, 2)
                if base_c.startswith("v_permlane") and wv & c.rd:
                    n = max(n, 2)
                if base_c in ("v_readlane_b32", "v_readfirstlane_b32") and wv & c.rd:
                    n = max(n, 1)
                pb = p.op.replace("_e32", "").replace("_e64", "")
                if pb in TRANS and wv & c.rd:
                    n = max(n, 1)
                if ("dst_sel:WORD" in p.text or "dst_sel:BYTE" in p.text) and wv & (c.rd | c.wr):
                    n = max(n, 1)
                if pb.startswith("v_dot2") and wv & (c.rd | c.wr):
                    cb = base_c
                    if cb != pb:
                        n = max(n, 3)
                    else:
                        ops = split_ops(c.text.split(";")[0].split(None, 1)[1])
                        ab = set()
                        for o in ops[1:3]:
                            ab |= regs_of(o)
                        if wv & ab:
                            n = max(n, 3)
            if c.cls in ("vmem", "ds") and p.op.startswith("v_dot2") and wv & c.rd:
                n = max(n, 3)
        if ws_:
            if c.cls == "valu" and ws_ & c.rd:
                n = max(n, 2)
                if base_c in ("v_readlane_b32", "v_writelane_b32"):
                    n = max(n, 4)
            if c.cls == "mfma" and ws_ & c.rd:
                n = max(n, 2)
            if c.cls == "vmem" and ws_ & c.rd:
                n = max(n, 5)
            if c.cls in ("salu", "smem") and ws_ & c.rd:
                n = max(n, 1)
            if c.cls == "branch" and ("vcc", 0) in ws_ and "vcc" in c.op:
                n = max(n, 5)
        if ("exec", 0) in p.wr:
            if c.cls in ("valu", "mfma"):
                n = max(n, 5)
    elif p.cls == "mfma":
        big = {4: 8, 8: 12}[p.passes]
        ovl = {4: 6, 8: 10}[p.passes]
        war = {4: 3, 8: 7}[p.passes]
        if c.cls == "mfma":
            if p.wr & c.srcab:
                n = max(n, big)
            if p.wr & c.srcc:
                if not (p.wr == c.srcc and p.passes == c.passes):
                    n = max(n, ovl)
            elif p.wr & c.wr:
                n = max(n, ovl)
        elif c.cls in ("valu", "vmem", "ds"):
            if p.wr & (c.rd | c.wr):
                n = max(n, big)
            if c.cls == "valu" and p.srcc & c.wr:
                n = max(n, war)
            if c.cls in ("vmem", "ds") and p.srcc & c.wr:
                n = max(n, war)
    elif p.cls == "vmem":
        if p.store_data and (p.store_data & c.wr):
            n = max(n, 2 if c.cls == "valu" else 1)
    elif p.cls == "salu":
        if ("m0", 0) in p.wr and (c.lds_dma or "addtid" in c.op or c.op.startswith("s_movrel")):
            n = max(n, 1)
    return n


MAXWIN = 14


class Kernel:
    def __init__(self, name):
        self.name = name
        self.items = []
        self._uid = 0

    def __call__(self, text):
        for line in text.split("\n"):
            line = line.strip()
            if not line:
                continue
            if line.startswith(";"):
                self.items.append(("r", "    " + line))
            else:
                self.items.append(("i", Ins(line)))

    def label(self, name):
        self.items.append(("l", name))

    def newlabel(self, stem="L"):
        self._uid += 1
        return f"{self.name}_{stem}{self._uid}"

    STAMPS = False
    STAMP_BASE = 0x4000000

    def stamp(self, i, cyc=False):
        if not Kernel.STAMPS:
            return
        self(f"{'s_memtime' if cyc else 's_memrealtime'} s[{70+2*i}:{71+2*i}]")
        self("s_waitcnt lgkmcnt(0)")
        self.nstamps = max(getattr(self, "nstamps", 0), i + 1)

    def stamp_flush(self, kidx, srd=20):
        if not Kernel.STAMPS:
            return
        n = self.nstamps
        if Kernel.DBG:
            sel = {0: (0, 200, [0, 4], 0), 1: (1, 5, [0, 5, 8], 2), 2: (2, 5, [0, 4, 8], 5), 3: (3, 5, [0, 2, 5, 6, 8, 9, 13], 8)}
            if kidx not in sel:
                return
            launch, wg, idx, slot = sel[kidx]
            L = self.newlabel("dbg")
            self(f"s_cmp_lg_u32 s2, {wg}")
            self(f"s_cbranch_scc1 {L}")
            self(f"s_cmp_lg_u32 s3, 0")
            self(f"s_cbranch_scc1 {L}")
            if launch < 3:
                self("s_mov_b64 exec, 1")
                self("s_mov_b32 s98, 0x58000")
                for j, i in enumerate(idx):
                    self(f"v_mov_b32 v1, s{70+2*i}")
                    self(f"buffer_store_dword v1, off, s[20:23], s98 offset:{4*(slot+j)}")
            else:
                self("s_load_dwordx2 s[24:25], s[0:1], 88")
                self("s_waitcnt lgkmcnt(0)")
                self("s_mov_b32 s26, 256")
                self("s_mov_b32 s27, 0x20000")
                self("s_mov_b64 exec, 1")
                self("s_mov_b32 s98, 0x58000")
                self("buffer_load_dwordx4 v[8:11], off, s[20:23], s98")
                self("buffer_load_dwordx4 v[12:15], off, s[20:23], s98 offset:16")
                self("s_waitcnt vmcnt(0)")
                self("buffer_store_dwordx4 v[8:11], off, s[24:27], 0")
                self("buffer_store_dwordx4 v[12:15], off, s[24:27], 0 offset:16")
                for j, i in enumerate(idx):
                    self(f"v_mov_b32 v1, s{70+2*i}")
                    self(f"buffer_store_dword v1, off, s[24:27], 0 offset:{4*(slot+j)}")
            self.label(L)
            return
        self("s_mov_b64 exec, 1")
        self(f"s_lshl_b32 s98, s2, 3")
        self(f"s_add_u32 s98, s98, s3")
        self(f"s_lshl_b32 s98, s98, 6")
        self(f"s_add_u32 s98, s98, {Kernel.STAMP_BASE + kidx * 2048 * 8 * 64}")
        self(f"s_mov_b32 s{srd+2}, 0x10000000")
        self("v_mov_b32 v0, 0")
        for i in range(n):
            self(f"v_mov_b32 v1, s{70+2*i}")
            self(f"buffer_store_dword v1, v0, s[{srd}:{srd+3}], s98 offen offset:{4*i}")

    DBG = False
    def dbgstamp(self, launch, slot, wg=0):
        if not Kernel.DBG:
            return
        L = self.newlabel("dbg")
        self(f"s_cmp_lg_u32 s2, {wg}")
        self(f"s_cbranch_scc1 {L}")
        self(f"s_cmp_lg_u32 s3, 0")
        self(f"s_cbranch_scc1 {L}")
        self("s_load_dwordx2 s[92:93], s[0:1], 88")
        self("s_memrealtime s[90:91]")
        self("s_waitcnt lgkmcnt(0)")
        self(f"s_sub_u32 s92, s92, {launch*512}")
        self("s_subb_u32 s93, s93, 0")
        self("s_mov_b32 s94, 256")
        self("s_mov_b32 s95, 0x20000")
        self("s_mov_b64 s[96:97], exec")
        self("s_mov_b64 exec, 1")
        self("v_mov_b32 v1, s90")
        self(f"buffer_store_dword v1, off, s[92:95], 0 offset:{4*slot}")
        self("s_mov_b64 exec, s[96:97]")
        self.label(L)

    def raw(self, text):
        self.items.append(("r", text))

    def finish(self):
        items = self.items
        i = 0
        n_ins = 0
        while i < len(items):
            kind, it = items[i]
            if kind != "i" or it.cls in ("nop", "misc"):
                i += 1
                continue
            need = self._need(items, i)
            if need > 0:
                while need > 0:
                    k = min(need, 16)
                    items.insert(i, ("i", Ins(f"s_nop {k - 1}")))
                    i += 1
                    need -= k
                    n_ins += 1
            i += 1
        out = []
        for kind, it in items:
            if kind == "i":
                out.append("    " + it.text)
            elif kind == "l":
                out.append(it + ":")
            else:
                out.append(it)
        self.n_nops = n_ins
        return "\n".join(out) + "\n"

    def _need(self, items, idx):
        c = items[idx][1]
        if not hasattr(self, "_br") or self._brlen != len(items):
            self._br = {}
            for j, (k, it) in enumerate(items):
                if k == "i" and it.cls == "branch":
                    self._br.setdefault(it.target, []).append(j)
            self._brlen = len(items)
        best = 0
        stack = [(idx - 1, 0)]
        seen = set()
        while stack:
            j, dist = stack.pop()
            while j >= 0 and dist < MAXWIN:
                if (j, dist) in seen:
                    break
                seen.add((j, dist))
                k, it = items[j]
                if k == "l":
                    for b in self._br.get(it, []):
                        stack.append((b, dist))
                    j -= 1
                    continue
                if k == "r":
                    j -= 1
                    continue
                if it.op in ("s_branch", "s_endpgm") and j != idx - 1 + 1 and not self._arrived_by_branch(j, stack):
                    pass
                n = need_between(it, c)
                if n > dist:
                    best = max(best, n - dist)
                dist += it.ws
                pj = j - 1
                while pj >= 0 and items[pj][0] == "r":
                    pj -= 1
                if pj >= 0 and items[pj][0] == "i" and items[pj][1].op in ("s_branch", "s_endpgm"):
                    break
                j -= 1
        return best

    def _arrived_by_branch(self, j, stack):
        return False


def descriptor(name, vgprs, sgprs=102, accum=None, agprs=0, wg_y=False):
    accum = accum if accum is not None else ((vgprs + 3) // 4) * 4
    accum = max(4, min(256, accum))
    nfv = accum + agprs if agprs else vgprs
    t = f""".section .rodata,"a"
.p2align 6
.amdhsa_kernel {name}
  .amdhsa_next_free_vgpr {nfv}
  .amdhsa_next_free_sgpr {sgprs}
  .amdhsa_accum_offset {accum}
  .amdhsa_group_segment_fixed_size 0
  .amdhsa_kernarg_size 104
  .amdhsa_user_sgpr_count 2
  .amdhsa_user_sgpr_kernarg_segment_ptr 1
  .amdhsa_system_sgpr_workgroup_id_x 1
"""
    if wg_y:
        t += "  .amdhsa_system_sgpr_workgroup_id_y 1\n"
    t += "  .amdhsa_float_denorm_mode_32 3\n"
    t += ".end_amdhsa_kernel\n"
    return t


def kernel_text(k):
    body = k.finish()
    return f""".text
.globl {k.name}
.p2align 8
.type {k.name},@function
{k.name}:
{body}"""


def max_regs(k):
    mv = ms = ma = -1
    for kind, it in k.items:
        if kind != "i":
            continue
        for r in it.rd | it.wr:
            if r[0] == "v":
                mv = max(mv, r[1])
            elif r[0] == "s":
                ms = max(ms, r[1])
            elif r[0] == "a":
                ma = max(ma, r[1])
    return mv + 1, ms + 1, ma + 1
```

```python
from asmlib import *
from layout import *
import os
GVW = int(os.environ.get('GVW', '4'))
PFW = int(os.environ.get('PFW', '4'))
FW = int(os.environ.get('FW', '4'))
NT = os.environ.get('NT', 'nt')

def srd(k, dst, ptr, nbytes):
    k(f"s_mov_b32 s{dst}, s{ptr}")
    k(f"s_mov_b32 s{dst+1}, s{ptr+1}")
    k(f"s_mov_b32 s{dst+2}, {nbytes}")
    k(f"s_mov_b32 s{dst+3}, 0x20000")

def round_bf16(k, dst, src):
    k(f"v_cvt_pk_bf16_f32 v{dst}, v{src}, v{src}")
    k(f"v_and_b32 v{dst}, 0xffff0000, v{dst}")

q4 = lambda r: f"v[{r}:{r+3}]"
q2 = lambda r: f"v[{r}:{r+1}]"

def job_gvwg(k, sidx, ph, lds_off, win=2):
    LX = k.newlabel("gvx")
    win = GVW
    k(f"s_lshr_b32 s31, s{sidx}, 1")
    k("s_add_u32 s31, s31, 32")
    k(f"s_and_b32 s30, s{sidx}, 1")
    k("v_and_b32 v3, 7, v0")
    k("v_lshrrev_b32 v4, 3, v0")
    k(f"v_mul_u32_u24 v5, {8*12288}, v4")
    k("v_lshl_add_u32 v5, v3, 4, v5")
    k("v_lshlrev_b32 v6, 5, v4")
    k("s_lshl_b32 s32, s30, 10")
    k(f"s_add_u32 s32, s32, {SILU + ph*2048}")
    C = 16
    for x in range(2):
        k(f"buffer_load_dwordx4 {q4(C+4*x)}, v6, s[20:23], s32 offen offset:{16*x}")
    k(f"s_mul_i32 s33, s30, {256*12288}")
    k("s_lshl_b32 s34, s31, 7")
    k("s_add_u32 s33, s33, s34")
    k(f"s_add_u32 s33, s33, {ph*512*12288}") if ph else None
    k("s_mul_i32 s34, s30, 24576")
    k("s_lshl_b32 s35, s31, 8")
    k("s_add_u32 s34, s34, s35")
    k(f"s_add_u32 s34, s34, {MODP + 4*24576}")
    k("v_lshlrev_b32 v9, 2, v2")
    if ph:
        k("buffer_load_dword v12, v9, s[20:23], s34 offen")
    srd(k, 12, 52, 1024 * 12288)
    W = 48
    def ld(j):
        k(f"buffer_load_dwordx4 {q4(W+4*j)}, v5, s[12:15], s33 offen {NT}")
        k("s_add_u32 s33, s33, 12288")
    for j in range(win):
        ld(j)
    A = 40
    for j in range(8):
        k(f"s_waitcnt vmcnt({min(win-1, 7-j)})")
        if j + win < 8:
            ld(j + win)
        for i in range(4):
            k(f"v_lshlrev_b32 v{32+2*i}, 16, v{W+4*j+i}")
            k(f"v_and_b32 v{33+2*i}, 0xffff0000, v{W+4*j+i}")
        sp = C + (j & ~1)
        sel = "op_sel:[0,1,0] op_sel_hi:[1,1,1]" if j & 1 else "op_sel_hi:[1,0,1]"
        for i in range(4):
            if j == 0:
                k(f"v_pk_mul_f32 {q2(A+2*i)}, {q2(32+2*i)}, {q2(sp)} op_sel_hi:[1,0]")
            else:
                k(f"v_pk_fma_f32 {q2(A+2*i)}, {q2(32+2*i)}, {q2(sp)}, {q2(A+2*i)} {sel}")
    for i in range(4):
        k(f"v_permlane32_swap_b32 v{A+i}, v{A+4+i}")
    for i in range(0, 4, 2):
        k(f"v_pk_add_f32 {q2(A+i)}, {q2(A+i)}, {q2(A+4+i)}")
    for i in range(2):
        k(f"v_permlane16_swap_b32 v{A+i}, v{A+2+i}")
    k(f"v_pk_add_f32 {q2(A)}, {q2(A)}, {q2(A+2)}")
    for i in range(2):
        k(f"v_add_f32_dpp v{A+i}, v{A+i}, v{A+i} row_ror:8 row_mask:0xf bank_mask:0xf")
    k("v_lshlrev_b32 v7, 5, v3")
    k("v_lshrrev_b32 v8, 4, v2")
    k("v_lshl_add_u32 v7, v8, 3, v7")
    k("s_lshl_b32 s35, s3, 8")
    k("v_add_u32 v7, s35, v7")
    k(f"ds_write_b64 v7, {q2(A)} offset:{lds_off}")
    k("s_waitcnt lgkmcnt(0)")
    k("s_barrier")
    k("s_cmp_lg_u32 s3, 0")
    k(f"s_cbranch_scc1 {LX}")
    k(f"ds_read2st64_b32 v[10:11], v9 offset0:{lds_off//256} offset1:{lds_off//256+1}")
    k(f"ds_read2st64_b32 v[14:15], v9 offset0:{lds_off//256+2} offset1:{lds_off//256+3}")
    k("s_waitcnt lgkmcnt(0)")
    k("v_add_f32 v10, v10, v11")
    k("v_add_f32 v14, v14, v15")
    k("v_add_f32 v10, v10, v14")
    if ph:
        k("v_add_f32 v10, v10, v12")
        k(f"s_add_u32 s34, s34, {2*24576}")
    k("buffer_store_dword v10, v9, s[20:23], s34 offen")
    k.label(LX)

def job_gvwg16(k, sidx, lds_off):
    LX = k.newlabel("gvx")
    win = GVW
    k(f"s_lshr_b32 s31, s{sidx}, 1")
    k("s_add_u32 s31, s31, 32")
    k(f"s_and_b32 s30, s{sidx}, 1")
    k("v_and_b32 v3, 7, v0")
    k("v_lshrrev_b32 v4, 3, v0")
    k(f"v_mul_u32_u24 v5, {16*12288}, v4")
    k("v_lshl_add_u32 v5, v3, 4, v5")
    k("v_lshlrev_b32 v6, 6, v4")
    k("s_lshl_b32 s32, s30, 11")
    k(f"s_add_u32 s32, s32, {SILU}")
    C = 16
    for x in range(4):
        k(f"buffer_load_dwordx4 {q4(C+4*x)}, v6, s[20:23], s32 offen offset:{16*x}")
    k(f"s_mul_i32 s33, s30, {512*12288}")
    k("s_lshl_b32 s34, s31, 7")
    k("s_add_u32 s33, s33, s34")
    k("s_mul_i32 s34, s30, 24576")
    k("s_lshl_b32 s35, s31, 8")
    k("s_add_u32 s34, s34, s35")
    k(f"s_add_u32 s34, s34, {MODP + 6*24576}")
    k("v_lshlrev_b32 v9, 2, v2")
    srd(k, 12, 52, 1024 * 12288)
    W = 48
    def ld(j):
        k(f"buffer_load_dwordx4 {q4(W+4*j)}, v5, s[12:15], s33 offen {NT}")
        k("s_add_u32 s33, s33, 12288")
    for j in range(win):
        ld(j)
    A = 40
    for j in range(16):
        k(f"s_waitcnt vmcnt({min(win-1, 15-j)})")
        if j + win < 16:
            ld(j + win)
        for i in range(4):
            k(f"v_lshlrev_b32 v{32+2*i}, 16, v{W+4*j+i}")
            k(f"v_and_b32 v{33+2*i}, 0xffff0000, v{W+4*j+i}")
        sp = C + (j & ~1)
        sel = "op_sel:[0,1,0] op_sel_hi:[1,1,1]" if j & 1 else "op_sel_hi:[1,0,1]"
        for i in range(4):
            if j == 0:
                k(f"v_pk_mul_f32 {q2(A+2*i)}, {q2(32+2*i)}, {q2(sp)} op_sel_hi:[1,0]")
            else:
                k(f"v_pk_fma_f32 {q2(A+2*i)}, {q2(32+2*i)}, {q2(sp)}, {q2(A+2*i)} {sel}")
    for i in range(4):
        k(f"v_permlane32_swap_b32 v{A+i}, v{A+4+i}")
    for i in range(0, 4, 2):
        k(f"v_pk_add_f32 {q2(A+i)}, {q2(A+i)}, {q2(A+4+i)}")
    for i in range(2):
        k(f"v_permlane16_swap_b32 v{A+i}, v{A+2+i}")
    k(f"v_pk_add_f32 {q2(A)}, {q2(A)}, {q2(A+2)}")
    for i in range(2):
        k(f"v_add_f32_dpp v{A+i}, v{A+i}, v{A+i} row_ror:8 row_mask:0xf bank_mask:0xf")
    k("v_lshlrev_b32 v7, 5, v3")
    k("v_lshrrev_b32 v8, 4, v2")
    k("v_lshl_add_u32 v7, v8, 3, v7")
    k("s_lshl_b32 s35, s3, 8")
    k("v_add_u32 v7, s35, v7")
    k(f"ds_write_b64 v7, {q2(A)} offset:{lds_off}")
    k("s_waitcnt lgkmcnt(0)")
    k("s_barrier")
    k("s_cmp_lg_u32 s3, 0")
    k(f"s_cbranch_scc1 {LX}")
    k(f"ds_read2st64_b32 v[10:11], v9 offset0:{lds_off//256} offset1:{lds_off//256+1}")
    k(f"ds_read2st64_b32 v[14:15], v9 offset0:{lds_off//256+2} offset1:{lds_off//256+3}")
    k("s_waitcnt lgkmcnt(0)")
    k("v_add_f32 v10, v10, v11")
    k("v_add_f32 v14, v14, v15")
    k("v_add_f32 v10, v10, v14")
    k("buffer_store_dword v10, v9, s[20:23], s34 offen")
    k.label(LX)

def job_filter(k, sidx, sync=None):
    k(f"s_bfe_u32 s30, s{sidx}, 0x20002")
    k(f"s_bfe_u32 s31, s{sidx}, 0x20004")
    k("s_lshl_b32 s31, s31, 2")
    k(f"s_and_b32 s32, s{sidx}, 3")
    k("s_add_u32 s31, s31, s32")
    k(f"s_lshr_b32 s33, s{sidx}, 6")
    k("s_lshl_b32 s34, s31, 2")
    k("s_lshl_b32 s35, s33, 8")
    k("s_add_u32 s34, s34, s35")
    k("s_mul_i32 s34, s34, 1026")
    k("s_lshl_b32 s35, s30, 8")
    k("s_add_u32 s34, s34, s35")
    k("v_and_b32 v3, 3, v2")
    k("v_lshrrev_b32 v4, 2, v2")
    k("v_mul_u32_u24 v5, 1026, v3")
    k("v_and_b32 v7, 2, v5")
    k("v_and_b32 v5, -4, v5")
    k("v_lshl_add_u32 v5, v4, 4, v5")
    k("s_bfe_u32 s35, s31, 0x10002")
    k("s_lshl_b32 s35, s35, 8")
    k("s_bfe_u32 s36, s31, 0x10003")
    k("s_lshl_b32 s36, s36, 7")
    k("s_add_u32 s35, s35, s36")
    k("s_lshl_b32 s36, s33, 4")
    k("s_add_u32 s35, s35, s36")
    k("s_and_b32 s36, s31, 3")
    k("s_lshl_b32 s36, s36, 2")
    k("s_add_u32 s35, s35, s36")
    k("s_lshl_b32 s35, s35, 4")
    k(f"s_mul_i32 s36, s30, {128*CP}")
    k("s_add_u32 s35, s35, s36")
    k(f"s_add_u32 s35, s35, {WT}")
    k(f"v_mul_u32_u24 v6, {8*CP}, v4")
    k("v_lshl_add_u32 v6, v3, 4, v6")
    k("s_mov_b32 s36, 0x05040100")
    k("s_mov_b32 s37, 0x07060302")
    srd(k, 12, 56, S * NCOL * 2)
    srd(k, 16, 58, S * NCOL * 2)
    if sync: sync()
    R, I = 8, 32
    def grp(rr):
        k(f"buffer_load_dwordx4 {q4(R+6*rr)}, v5, s[12:15], s34 offen")
        k(f"buffer_load_dwordx4 {q4(I+6*rr)}, v5, s[16:19], s34 offen")
        k(f"buffer_load_dword v{R+6*rr+4}, v5, s[12:15], s34 offen offset:16")
        k(f"buffer_load_dword v{I+6*rr+4}, v5, s[16:19], s34 offen offset:16")
        k(f"s_add_u32 s34, s34, {64*1026}")
    for rr in range(FW):
        grp(rr)
    for rr in range(4):
        k(f"s_waitcnt vmcnt({4*min(FW-1, 3-rr)})")
        if rr + FW < 4:
            grp(rr + FW)
        for b in (R, I):
            for x in range(4):
                k(f"v_alignbyte_b32 v{b+6*rr+x}, v{b+6*rr+x+1}, v{b+6*rr+x}, v7")
    O = 56
    for e in range(8):
        o = O + 4 * e
        for rr in range(4):
            k(f"v_perm_b32 v{o+rr}, v{I+6*rr+(e>>1)}, v{R+6*rr+(e>>1)}, s{36+(e&1)}")
        k(f"buffer_store_dwordx4 {q4(o)}, v6, s[20:23], s35 offen")
        if e < 7:
            k(f"s_add_u32 s35, s35, {CP}")

def job_filter512(k, sidx):
    k(f"s_load_dwordx4 s[4:7], s[0:1], {KA_WR}")
    k(f"s_lshr_b32 s30, s{sidx}, 4")
    k("s_lshl_b32 s30, s30, 4")
    k(f"s_bfe_u32 s31, s{sidx}, 0x10003")
    k("s_lshl_b32 s31, s31, 5")
    k("s_add_u32 s30, s30, s31")
    k(f"s_and_b32 s31, s{sidx}, 7")
    k("s_lshl_b32 s31, s31, 8")
    k("s_add_u32 s30, s30, s31")
    k("v_and_b32 v3, 3, v2")
    k("v_lshrrev_b32 v4, 2, v2")
    k("v_lshl_add_u32 v3, v3, 6, v4")
    k("v_add_u32 v3, s30, v3")
    k("v_sub_u32 v5, 2048, v3")
    k("v_and_b32 v5, 2047, v5")
    k("v_mul_u32_u24 v3, 1026, v3")
    k("v_mul_u32_u24 v5, 1026, v5")
    k(f"s_lshl_b32 s31, s{sidx}, 8")
    k(f"s_add_u32 s31, s31, {WT + 512*CP}")
    k(f"s_add_u32 s32, s31, {CP}")
    k("v_lshlrev_b32 v4, 2, v2")
    k("s_waitcnt lgkmcnt(0)")
    srd(k, 12, 4, S * NCOL * 2)
    srd(k, 16, 6, S * NCOL * 2)
    for m, va in enumerate((3, 5)):
        for ar in range(2):
            for c in range(2):
                k(f"buffer_load_ushort v{16+4*m+2*ar+c}, v{va}, s[{12+4*ar}:{15+4*ar}], 0 offen offset:{1024*c}")
    k("s_waitcnt vmcnt(0)")
    for x in range(8):
        k(f"v_lshlrev_b32 v{16+x}, 16, v{16+x}")
    k("v_add_f32 v16, v16, v20")
    k("v_add_f32 v17, v17, v21")
    k("v_sub_f32 v18, v18, v22")
    k("v_sub_f32 v19, v19, v23")
    k("v_add_f32 v20, v16, v17")
    k("v_add_f32 v21, v18, v19")
    k("v_sub_f32 v22, v16, v17")
    k("v_sub_f32 v23, v18, v19")
    for x in range(20, 24):
        k(f"v_mul_f32 v{x}, 0.25, v{x}" if False else f"v_mul_f32 v{x}, {f32hex(0.25)}, v{x}")
    k("v_cvt_pk_bf16_f32 v16, v20, v21")
    k("v_cvt_pk_bf16_f32 v17, v22, v23")
    k("buffer_store_dword v16, v4, s[20:23], s31 offen")
    k("buffer_store_dword v17, v4, s[20:23], s32 offen")

def job_prefetch(k, sidx, ka_off, nbytes, per_wave_kb, start=0, win=2):
    win = PFW
    k(f"s_mul_i32 s30, s{sidx}, {per_wave_kb*1024}")
    k(f"s_add_u32 s30, s30, {start}") if start else None
    k("v_lshlrev_b32 v3, 4, v2")
    srd(k, 12, 54, nbytes)
    for j in range(per_wave_kb):
        if j and j % 4 == 0:
            k("s_add_u32 s30, s30, 4096")
        if j >= win:
            k(f"s_waitcnt vmcnt({win-1})")
        k(f"buffer_load_dwordx4 {q4(8+4*(j%16))}, v3, s[12:15], s30 offen offset:{(j%4)*1024}")

def side_wgs(k, first_wg, jobs, lend, kidx=None):
    k(f"s_sub_u32 s51, s2, {first_wg}")
    for n, per_wave, fn in jobs:
        nxt = k.newlabel("job")
        k(f"s_cmp_ge_u32 s51, {n}")
        k(f"s_cbranch_scc1 {nxt}")
        if per_wave == 2:
            k("s_cmp_ge_u32 s3, 2")
            k(f"s_cbranch_scc1 {lend}")
            k("s_lshl_b32 s50, s51, 1")
            k("s_add_u32 s50, s50, s3")
        elif per_wave:
            k("s_lshl_b32 s50, s51, 2")
            k("s_add_u32 s50, s50, s3")
        else:
            k("s_mov_b32 s50, s51")
        fn(k, 50)
        if Kernel.STAMPS and kidx is not None:
            sv = k.nstamps
            k.stamp(1)
            k("s_waitcnt vmcnt(0)")
            k.stamp(2)
            k.nstamps = 3
            k.stamp_flush(kidx)
            k.nstamps = sv
        k("s_endpgm")
        k.label(nxt)
        k(f"s_sub_u32 s51, s51, {n}")
    k(f"s_branch {lend}")

def side_waves(k, lanes, lend, kidx=None, nbar=2):
    sync = lambda n=1: k("s_barrier") if n <= nbar else None
    for fw, nw, jobs in lanes:
        nxt_lane = k.newlabel("lane")
        k(f"s_cmp_ge_u32 s3, {fw + nw}")
        k(f"s_cbranch_scc1 {nxt_lane}")
        k(f"s_cmp_lt_u32 s3, {fw}")
        k(f"s_cbranch_scc1 {lend}")
        k(f"s_mul_i32 s50, s2, {nw}")
        k("s_add_u32 s50, s50, s3")
        k(f"s_sub_u32 s50, s50, {fw}")
        for n, fn in jobs:
            nxt = k.newlabel("job")
            k(f"s_cmp_ge_u32 s50, {n}")
            k(f"s_cbranch_scc1 {nxt}")
            fn(k, 50, sync)
            if Kernel.STAMPS and kidx is not None:
                sv = k.nstamps
                k.stamp(1)
                k("s_waitcnt vmcnt(0)")
                k.stamp(2)
                k.nstamps = 3
                k.stamp_flush(kidx)
                k.nstamps = sv
            k("s_endpgm")
            k.label(nxt)
            k(f"s_sub_u32 s50, s50, {n}")
        k(f"s_branch {lend}")
        k.label(nxt_lane)
    k(f"s_branch {lend}")

def self_prefetch(k, nkb=8):
    lab = k.newlabel("pc")
    k("s_getpc_b64 s[24:25]")
    k.label(lab)
    k(f"s_sub_u32 s24, s24, {lab}-{k.name}")
    k("s_subb_u32 s25, s25, 0")
    k(f"s_mov_b32 s26, code_end-{k.name}")
    k("s_mov_b32 s27, 0x20000")
    k("s_lshr_b32 s28, s2, 1")
    k("s_and_b32 s28, s28, -4")
    k("s_add_u32 s28, s28, s3")
    k(f"s_and_b32 s28, s28, {nkb-1}")
    k("s_lshl_b32 s28, s28, 10")
    k("v_lshlrev_b32 v120, 4, v2")
    k("buffer_load_dwordx4 v[124:127], v120, s[24:27], s28 offen")
```

```python
from asmlib import *
from layout import *
from jobs import *

LOG2E = 1.4426950408889634
K0_NA, K0_NB = 32 * KS0, 256
K0_NP = 128
PF_KB = 2
K0_NF = 128 if os.environ.get('MEGA', '1') == '1' else 0
K0_NWG = K0_NA + K0_NB + K0_NP + K0_NF

def gen_k0():
    k = Kernel("k0_kernel")
    LB, LP, LEND = k.newlabel("B"), k.newlabel("P"), k.newlabel("end")
    def fin():
        k.stamp(3)
        if Kernel.STAMPS:
            k("s_waitcnt vmcnt(0)")
        k.stamp(4)
        k.stamp_flush(0)
    k(f"s_cmp_ge_u32 s2, {K0_NWG}")
    k(f"s_cbranch_scc1 {LEND}")
    k.stamp(0)
    k(f"s_load_dwordx2 s[8:9], s[0:1], {KA_WS}")
    k(f"s_load_dwordx4 s[4:7], s[0:1], {KA_C}")
    k(f"s_load_dwordx2 s[24:25], s[0:1], {KA_X}")
    k(f"s_load_dwordx4 s[56:59], s[0:1], {KA_WR}")
    k("v_lshrrev_b32 v1, 6, v0")
    k("v_and_b32 v2, 63, v0")
    k("v_readfirstlane_b32 s3, v1")
    k(f"s_cmp_lt_u32 s2, {K0_NP}")
    k(f"s_cbranch_scc1 {LP}")
    k(f"s_sub_u32 s2, s2, {K0_NP}")
    k(f"s_cmp_ge_u32 s2, {K0_NA}")
    k(f"s_cbranch_scc1 {LB}")
    NJ = 1024 // KS0 // 32
    k(f"s_lshr_b32 s31, s2, {KS0.bit_length()-1}")
    k(f"s_and_b32 s30, s2, {KS0-1}")
    k("v_and_b32 v3, 7, v0")
    k("v_lshrrev_b32 v4, 3, v0")
    k(f"v_mul_u32_u24 v5, {NJ*12288}, v4")
    k("v_lshl_add_u32 v5, v3, 4, v5")
    k("v_lshlrev_b32 v6, 4, v4")
    k(f"s_mul_i32 s33, s30, {32*NJ*12288}")
    k("s_lshl_b32 s34, s31, 7")
    k("s_add_u32 s33, s33, s34")
    k("s_lshl_b32 s32, s30, 9")
    k("s_waitcnt lgkmcnt(0)")
    srd(k, 12, 6, 1024 * 12288)
    srd(k, 16, 4, 2048)
    srd(k, 20, 8, WS_END)
    k.stamp(1)
    k("buffer_load_dwordx4 v[8:11], v6, s[16:19], s32 offen")
    W = 48
    for j in range(NJ):
        k(f"buffer_load_dwordx4 {q4(W+4*j)}, v5, s[12:15], s33 offen nt")
        if j < NJ - 1:
            k(f"s_add_u32 s33, s33, 12288")
    k(f"s_waitcnt vmcnt({NJ})")
    C, E = 16, 24
    for i in range(4):
        k(f"v_lshlrev_b32 v{C+2*i}, 16, v{8+i}")
        k(f"v_and_b32 v{C+2*i+1}, 0xffff0000, v{8+i}")
    for j in range(8):
        k(f"v_mul_f32 v{E+j}, {f32hex(-LOG2E)}, v{C+j}")
    for j in range(8):
        k(f"v_exp_f32 v{E+j}, v{E+j}")
    for j in range(8):
        k(f"v_add_f32 v{E+j}, 1.0, v{E+j}")
    for j in range(8):
        k(f"v_rcp_f32 v{E+j}, v{E+j}")
    for j in range(0, 8, 2):
        k(f"v_pk_mul_f32 {q2(C+j)}, {q2(C+j)}, {q2(E+j)}")
    for j in range(0, 8, 2):
        k(f"v_cvt_pk_bf16_f32 v{E+j}, v{C+j}, v{C+j+1}")
    for j in range(0, 8, 2):
        k(f"v_lshlrev_b32 v{C+j}, 16, v{E+j}")
        k(f"v_and_b32 v{C+j+1}, 0xffff0000, v{E+j}")
    A = 40
    for j in range(NJ):
        k(f"s_waitcnt vmcnt({NJ-1-j})")
        for i in range(4):
            k(f"v_lshlrev_b32 v{32+2*i}, 16, v{W+4*j+i}")
            k(f"v_and_b32 v{33+2*i}, 0xffff0000, v{W+4*j+i}")
        sp = C + (j & ~1)
        sel = "op_sel:[0,1,0] op_sel_hi:[1,1,1]" if j & 1 else "op_sel_hi:[1,0,1]"
        for i in range(4):
            if j == 0:
                k(f"v_pk_mul_f32 {q2(A+2*i)}, {q2(32+2*i)}, {q2(sp)} op_sel_hi:[1,0]")
            else:
                k(f"v_pk_fma_f32 {q2(A+2*i)}, {q2(32+2*i)}, {q2(sp)}, {q2(A+2*i)} {sel}")
    k.stamp(2)
    for i in range(4):
        k(f"v_permlane32_swap_b32 v{A+i}, v{A+4+i}")
    for i in range(0, 4, 2):
        k(f"v_pk_add_f32 {q2(A+i)}, {q2(A+i)}, {q2(A+4+i)}")
    for i in range(2):
        k(f"v_permlane16_swap_b32 v{A+i}, v{A+2+i}")
    k(f"v_pk_add_f32 {q2(A)}, {q2(A)}, {q2(A+2)}")
    for i in range(2):
        k(f"v_add_f32_dpp v{A+i}, v{A+i}, v{A+i} row_ror:8 row_mask:0xf bank_mask:0xf")
    k("v_lshlrev_b32 v7, 5, v3")
    k("v_lshrrev_b32 v8, 4, v2")
    k("v_lshl_add_u32 v7, v8, 3, v7")
    k("v_lshl_add_u32 v7, v1, 8, v7")
    k(f"ds_write_b64 v7, v[{A}:{A+1}]")
    LNS = k.newlabel("nosilu")
    k("s_cmp_lg_u32 s31, 0")
    k(f"s_cbranch_scc1 {LNS}")
    k("v_lshlrev_b32 v6, 5, v4")
    k("s_lshl_b32 s32, s30, 10")
    k(f"s_add_u32 s32, s32, {SILU}")
    k(f"buffer_store_dwordx4 {q4(C)}, v6, s[20:23], s32 offen")
    k(f"buffer_store_dwordx4 {q4(C+4)}, v6, s[20:23], s32 offen offset:16")
    k.label(LNS)
    k("s_waitcnt lgkmcnt(0)")
    k("s_barrier")
    k("s_cmp_lg_u32 s3, 0")
    k(f"s_cbranch_scc1 {LEND}")
    k("v_lshlrev_b32 v7, 2, v2")
    k("ds_read2st64_b32 v[8:9], v7 offset0:0 offset1:1")
    k("ds_read2st64_b32 v[10:11], v7 offset0:2 offset1:3")
    k("s_mul_i32 s34, s30, 24576")
    k("s_lshr_b32 s35, s31, 4")
    k("s_lshl_b32 s35, s35, 12")
    k("s_add_u32 s34, s34, s35")
    k("s_bfe_u32 s35, s31, 0x10003")
    k("s_lshl_b32 s35, s35, 9")
    k("s_add_u32 s34, s34, s35")
    k("s_bfe_u32 s35, s31, 0x20001")
    k("s_lshl_b32 s35, s35, 2")
    k("s_add_u32 s34, s34, s35")
    k("s_and_b32 s35, s31, 1")
    k("s_lshl_b32 s35, s35, 8")
    k("s_add_u32 s34, s34, s35")
    k("v_and_b32 v12, 3, v2")
    k("v_lshlrev_b32 v12, 10, v12")
    k("v_lshrrev_b32 v13, 2, v2")
    k("v_lshl_add_u32 v12, v13, 4, v12")
    k("s_waitcnt lgkmcnt(0)")
    k("v_add_f32 v8, v8, v9")
    k("v_add_f32 v10, v10, v11")
    k("v_add_f32 v8, v8, v10")
    k("buffer_store_dword v8, v12, s[20:23], s34 offen")
    fin()
    k("s_endpgm")
    k.label(LB)
    k(f"s_sub_u32 s29, s2, {K0_NA}")
    LFI = k.newlabel("filt")
    k(f"s_cmp_ge_u32 s29, {K0_NB}")
    k(f"s_cbranch_scc1 {LFI}")
    k("s_lshr_b32 s30, s3, 1")
    k("s_lshl_b32 s30, s30, 4")
    k("s_and_b32 s31, s3, 1")
    k("s_lshl_b32 s31, s31, 1")
    k("s_add_u32 s30, s30, s31")
    k("s_bfe_u32 s31, s29, 0x20004")
    k("s_lshl_b32 s31, s31, 2")
    k("s_add_u32 s30, s30, s31")
    k("s_lshl_b32 s30, s30, 6")
    k("s_lshr_b32 s31, s29, 6")
    k("s_lshl_b32 s31, s31, 4")
    k("s_add_u32 s30, s30, s31")
    k("s_and_b32 s31, s29, 15")
    k("s_add_u32 s30, s30, s31")
    k("s_lshl_b32 s30, s30, 11")
    k("v_and_b32 v3, 1, v2")
    k("v_lshlrev_b32 v3, 17, v3")
    k("v_bfe_u32 v4, v2, 1, 3")
    k("v_lshl_add_u32 v3, v4, 3, v3")
    k("v_lshrrev_b32 v4, 4, v2")
    k("v_lshl_add_u32 v3, v4, 6, v3")
    k("s_waitcnt lgkmcnt(0)")
    srd(k, 12, 24, S * D * 2)
    srd(k, 20, 8, WS_END)
    k.stamp(1)
    for j in range(8):
        k(f"buffer_load_dwordx2 v[{8+2*j}:{9+2*j}], v3, s[12:15], s30 offen offset:{256*j}")
    X = 24
    for j in range(8):
        k(f"s_waitcnt vmcnt({7-j})")
        k(f"v_lshlrev_b32 v{X+4*j}, 16, v{8+2*j}")
        k(f"v_and_b32 v{X+4*j+1}, 0xffff0000, v{8+2*j}")
        k(f"v_lshlrev_b32 v{X+4*j+2}, 16, v{9+2*j}")
        k(f"v_and_b32 v{X+4*j+3}, 0xffff0000, v{9+2*j}")
        if j == 0:
            k(f"v_pk_add_f32 v[56:57], v[{X}:{X+1}], v[{X+2}:{X+3}]")
            k(f"v_pk_mul_f32 v[58:59], v[{X}:{X+1}], v[{X}:{X+1}]")
            k(f"v_pk_mul_f32 v[60:61], v[{X+2}:{X+3}], v[{X+2}:{X+3}]")
        else:
            b = X + 4 * j
            k(f"v_pk_add_f32 v[56:57], v[56:57], v[{b}:{b+1}]")
            k(f"v_pk_fma_f32 v[58:59], v[{b}:{b+1}], v[{b}:{b+1}], v[58:59]")
            k(f"v_pk_add_f32 v[56:57], v[56:57], v[{b+2}:{b+3}]")
            k(f"v_pk_fma_f32 v[60:61], v[{b+2}:{b+3}], v[{b+2}:{b+3}], v[60:61]")
    k.stamp(2)
    k("v_pk_add_f32 v[58:59], v[58:59], v[60:61]")
    k("v_add_f32 v56, v56, v57")
    k("v_add_f32 v58, v58, v59")
    k("v_permlane32_swap_b32 v56, v58")
    k("v_add_f32 v56, v56, v58")
    k("v_mov_b32 v57, v56")
    k("v_permlane16_swap_b32 v57, v56")
    k("v_add_f32 v56, v56, v57")
    k("v_add_f32_dpp v56, v56, v56 quad_perm:[2,3,0,1] row_mask:0xf bank_mask:0xf")
    k("v_add_f32_dpp v56, v56, v56 row_ror:4 row_mask:0xf bank_mask:0xf")
    k("v_add_f32_dpp v56, v56, v56 row_ror:8 row_mask:0xf bank_mask:0xf")
    k("v_mov_b32 v57, v56")
    k("v_permlane32_swap_b32 v57, v56")
    ln_stats(k, 57, 56, 60, 58)
    for j in range(8):
        for h in range(2):
            b = X + 4 * j + 2 * h
            k(f"v_pk_fma_f32 v[{b}:{b+1}], v[{b}:{b+1}], v[60:61], v[60:61] op_sel:[0,0,1] op_sel_hi:[1,0,1]")
    k("s_lshl_b32 s31, s29, 2")
    k("s_add_u32 s31, s31, s3")
    k("s_lshl_b32 s31, s31, 12")
    k(f"s_add_u32 s31, s31, {XH}")
    k("v_lshlrev_b32 v3, 4, v2")
    for t in range(4):
        for jj in range(4):
            k(f"v_cvt_pk_bf16_f32 v{8+4*t+jj}, v{X+8*jj+t}, v{X+8*jj+4+t}")
        k(f"buffer_store_dwordx4 v[{8+4*t}:{11+4*t}], v3, s[20:23], s31 offen offset:{1024*t}")
    fin()
    k("s_endpgm")
    k.label(LFI)
    k(f"s_sub_u32 s50, s29, {K0_NB}")
    k("s_lshl_b32 s50, s50, 2")
    k("s_add_u32 s50, s50, s3")
    k("s_waitcnt lgkmcnt(0)")
    srd(k, 20, 8, WS_END)
    k.stamp(1)
    k.stamp(2)
    job_filter(k, 50)
    fin()
    k("s_endpgm")
    k.label(LP)
    lab = k.newlabel("pc")
    k("s_getpc_b64 s[12:13]")
    k.label(lab)
    k(f"s_sub_u32 s12, s12, {lab}-k0_kernel")
    k("s_subb_u32 s13, s13, 0")
    k("s_mov_b32 s14, code_end-k0_kernel")
    k("s_mov_b32 s15, 0x20000")
    k("s_lshr_b32 s30, s2, 3")
    k("s_lshl_b32 s30, s30, 2")
    k("s_add_u32 s30, s30, s3")
    k(f"s_mul_i32 s30, s30, {PF_KB*1024}")
    k("v_lshlrev_b32 v3, 4, v2")
    for j in range(PF_KB):
        k(f"buffer_load_dwordx4 {q4(8+4*j)}, v3, s[12:15], s30 offen offset:{j*1024}")
    k("s_waitcnt lgkmcnt(0)")
    srd(k, 20, 8, WS_END)
    LF = k.newlabel("F")
    k("s_cmp_ge_u32 s2, 5")
    k(f"s_cbranch_scc1 {LF}")
    k(f"v_mov_b32 v24, 0")
    k("v_lshlrev_b32 v4, 7, v0")
    k("s_lshl_b32 s31, s2, 15")
    k(f"s_add_u32 s31, s31, {FLG}")
    k("buffer_store_dword v24, v4, s[20:23], s31 offen")
    k("s_endpgm")
    k.label(LF)
    k("s_sub_u32 s50, s2, 8")
    k("s_cmp_ge_u32 s50, 32")
    k(f"s_cbranch_scc1 {LEND}")
    k("s_cmp_lg_u32 s3, 0")
    k(f"s_cbranch_scc1 {LEND}")
    job_filter512(k, 50)
    k.label(LEND)
    k("s_endpgm")
    return k, dict(grid=K0_NWG, block=256, lds=1024)


def ln_stats(k, vsum, vsq, out, tmp):
    k(f"v_mul_f32 v{vsum}, {f32hex(1/1024)}, v{vsum}")
    k(f"v_mul_f32 v{tmp}, v{vsum}, v{vsum}")
    k(f"v_mul_f32 v{vsq}, {f32hex(1/1024)}, v{vsq}")
    k(f"v_sub_f32 v{vsq}, v{vsq}, v{tmp}")
    k(f"v_max_f32 v{vsq}, 0, v{vsq}")
    k(f"v_cvt_pk_bf16_f32 v{tmp}, v{vsum}, v{vsq}")
    k(f"v_and_b32 v{vsq}, 0xffff0000, v{tmp}")
    k(f"v_lshlrev_b32 v{vsum}, 16, v{tmp}")
    k(f"v_add_f32 v{vsq}, {f32hex(1e-5)}, v{vsq}")
    round_bf16(k, vsq, vsq)
    k(f"v_sqrt_f32 v{vsq}, v{vsq}")
    round_bf16(k, vsq, vsq)
    k(f"v_rcp_f32 v{out}, v{vsq}")
    k(f"v_mul_f32 v{out+1}, v{vsum}, v{out}")
    k(f"v_sub_f32 v{out+1}, 0, v{out+1}")
```

```python
KA_X, KA_WR, KA_WI, KA_BX, KA_W1, KA_B1, KA_W2, KA_B2, KA_C, KA_WMOD, KA_OUT, KA_DBG, KA_WS = [8 * i for i in range(13)]

S, D, F = 2048, 1024, 3584
NCOL = 513

WS_BYTES = 268435456
MODP = 0x0000000
MODF = 0x0040000
SILU = 0x0050000
XH = 0x0100000
WT = 0x0500000
F1 = 0x0904000
HH = 0x0100000
F2 = 0x0F00000
X1 = 0x1400000
Y3 = 0x1800000
WS_END = 0x2C00000
CP = 8192
KS0 = 4
FLG = 0x0060000
FLS = 128
FL_A, FL_B, FL_1, FL_2, FL_G, FL_0, FL_T = [FLG + 256 * FLS * i for i in range(7)]
XCH = 0x1C00000
WS_END = 0x2400000
GBP = 0x00A0000
import os
F1Q = os.environ.get('F1Q', '1') == '1'
CT_0 = FLG + 7 * 256 * FLS
```

```python
import sys
sys.path.insert(0, 'dev')
from asmlib import *
from layout import *
import importlib

def build(kernels, path, tables=""):
    ref = open('adaLN_cond__spectral_gfnet__mixer_channel_mlp__prompt.s.ref').read()
    hdr = []
    for line in ref.splitlines():
        if line.startswith('; Override') : break
        hdr.append(line)
    hdr = "\n".join(hdr) + "\n"
    txt = '.amdgcn_target "amdgcn-amd-amdhsa--gfx950"\n'
    desc = ""
    for k, cfg in kernels:
        hdr += f"; @launch kernel={k.name} grid=({cfg['grid']},1,1) block=({cfg['block']},1,1) lds={cfg['lds']}\n"
        txt += kernel_text(k)
        nv, ns, na = max_regs(k)
        desc += descriptor(k.name, nv, max(ns, 16), agprs=na)
        print(k.name, 'vgpr', nv, 'sgpr', ns, 'agpr', na, 'nops', k.n_nops, 'instrs', sum(1 for x in k.items if x[0]=='i'))
    open(path, 'w').write(hdr + txt + tables + '.text\ncode_end:\n' + desc)

if __name__ == '__main__':
    import os
    Kernel.STAMPS = os.environ.get('STAMPS') == '1'
    Kernel.DBG = os.environ.get('DBG') == '1'
    import k0
    MODE = os.environ.get('MODE', 'one')
    ks = [k0.gen_k0()] if MODE != 'one' else []
    tables = ""
    for name in {'one': ('one',), 'mega': ('mega',), 'multi': ('k1', 'k2', 'tail')}[MODE]:
        try:
            m = importlib.import_module(name)
        except ModuleNotFoundError:
            break
        ks.append(getattr(m, 'gen_' + name)())
        if hasattr(m, 'tables'):
            tables += m.tables()
    out = sys.argv[1] if len(sys.argv) > 1 else 'adaLN_cond__spectral_gfnet__mixer_channel_mlp__prompt.s'
    build(ks, out, tables)
```

```python
from asmlib import *
from layout import *
from jobs import *

LOG2E = 1.4426950408889634
K0_NA, K0_NB = 32 * KS0, 256
K0_NP = 128
PF_KB = 2
K0_NF = 128 if os.environ.get('MEGA', '1') == '1' else 0
K0_NWG = K0_NA + K0_NB + K0_NP + K0_NF

def gen_k0():
    k = Kernel("k0_kernel")
    LB, LP, LEND = k.newlabel("B"), k.newlabel("P"), k.newlabel("end")
    def fin():
        k.stamp(3)
        if Kernel.STAMPS:
            k("s_waitcnt vmcnt(0)")
        k.stamp(4)
        k.stamp_flush(0)
    k(f"s_cmp_ge_u32 s2, {K0_NWG}")
    k(f"s_cbranch_scc1 {LEND}")
    k.stamp(0)
    k(f"s_load_dwordx2 s[8:9], s[0:1], {KA_WS}")
    k(f"s_load_dwordx4 s[4:7], s[0:1], {KA_C}")
    k(f"s_load_dwordx2 s[24:25], s[0:1], {KA_X}")
    k(f"s_load_dwordx4 s[56:59], s[0:1], {KA_WR}")
    k("v_lshrrev_b32 v1, 6, v0")
    k("v_and_b32 v2, 63, v0")
    k("v_readfirstlane_b32 s3, v1")
    k(f"s_cmp_lt_u32 s2, {K0_NP}")
    k(f"s_cbranch_scc1 {LP}")
    k(f"s_sub_u32 s2, s2, {K0_NP}")
    k(f"s_cmp_ge_u32 s2, {K0_NA}")
    k(f"s_cbranch_scc1 {LB}")
    NJ = 1024 // KS0 // 32
    k(f"s_lshr_b32 s31, s2, {KS0.bit_length()-1}")
    k(f"s_and_b32 s30, s2, {KS0-1}")
    k("v_and_b32 v3, 7, v0")
    k("v_lshrrev_b32 v4, 3, v0")
    k(f"v_mul_u32_u24 v5, {NJ*12288}, v4")
    k("v_lshl_add_u32 v5, v3, 4, v5")
    k("v_lshlrev_b32 v6, 4, v4")
    k(f"s_mul_i32 s33, s30, {32*NJ*12288}")
    k("s_lshl_b32 s34, s31, 7")
    k("s_add_u32 s33, s33, s34")
    k("s_lshl_b32 s32, s30, 9")
    k("s_waitcnt lgkmcnt(0)")
    srd(k, 12, 6, 1024 * 12288)
    srd(k, 16, 4, 2048)
    srd(k, 20, 8, WS_END)
    k.stamp(1)
    k("buffer_load_dwordx4 v[8:11], v6, s[16:19], s32 offen")
    W = 48
    for j in range(NJ):
        k(f"buffer_load_dwordx4 {q4(W+4*j)}, v5, s[12:15], s33 offen nt")
        if j < NJ - 1:
            k(f"s_add_u32 s33, s33, 12288")
    k(f"s_waitcnt vmcnt({NJ})")
    C, E = 16, 24
    for i in range(4):
        k(f"v_lshlrev_b32 v{C+2*i}, 16, v{8+i}")
        k(f"v_and_b32 v{C+2*i+1}, 0xffff0000, v{8+i}")
    for j in range(8):
        k(f"v_mul_f32 v{E+j}, {f32hex(-LOG2E)}, v{C+j}")
    for j in range(8):
        k(f"v_exp_f32 v{E+j}, v{E+j}")
    for j in range(8):
        k(f"v_add_f32 v{E+j}, 1.0, v{E+j}")
    for j in range(8):
        k(f"v_rcp_f32 v{E+j}, v{E+j}")
    for j in range(0, 8, 2):
        k(f"v_pk_mul_f32 {q2(C+j)}, {q2(C+j)}, {q2(E+j)}")
    for j in range(0, 8, 2):
        k(f"v_cvt_pk_bf16_f32 v{E+j}, v{C+j}, v{C+j+1}")
    for j in range(0, 8, 2):
        k(f"v_lshlrev_b32 v{C+j}, 16, v{E+j}")
        k(f"v_and_b32 v{C+j+1}, 0xffff0000, v{E+j}")
    A = 40
    for j in range(NJ):
        k(f"s_waitcnt vmcnt({NJ-1-j})")
        for i in range(4):
            k(f"v_lshlrev_b32 v{32+2*i}, 16, v{W+4*j+i}")
            k(f"v_and_b32 v{33+2*i}, 0xffff0000, v{W+4*j+i}")
        sp = C + (j & ~1)
        sel = "op_sel:[0,1,0] op_sel_hi:[1,1,1]" if j & 1 else "op_sel_hi:[1,0,1]"
        for i in range(4):
            if j == 0:
                k(f"v_pk_mul_f32 {q2(A+2*i)}, {q2(32+2*i)}, {q2(sp)} op_sel_hi:[1,0]")
            else:
                k(f"v_pk_fma_f32 {q2(A+2*i)}, {q2(32+2*i)}, {q2(sp)}, {q2(A+2*i)} {sel}")
    k.stamp(2)
    for i in range(4):
        k(f"v_permlane32_swap_b32 v{A+i}, v{A+4+i}")
    for i in range(0, 4, 2):
        k(f"v_pk_add_f32 {q2(A+i)}, {q2(A+i)}, {q2(A+4+i)}")
    for i in range(2):
        k(f"v_permlane16_swap_b32 v{A+i}, v{A+2+i}")
    k(f"v_pk_add_f32 {q2(A)}, {q2(A)}, {q2(A+2)}")
    for i in range(2):
        k(f"v_add_f32_dpp v{A+i}, v{A+i}, v{A+i} row_ror:8 row_mask:0xf bank_mask:0xf")
    k("v_lshlrev_b32 v7, 5, v3")
    k("v_lshrrev_b32 v8, 4, v2")
    k("v_lshl_add_u32 v7, v8, 3, v7")
    k("v_lshl_add_u32 v7, v1, 8, v7")
    k(f"ds_write_b64 v7, v[{A}:{A+1}]")
    LNS = k.newlabel("nosilu")
    k("s_cmp_lg_u32 s31, 0")
    k(f"s_cbranch_scc1 {LNS}")
    k("v_lshlrev_b32 v6, 5, v4")
    k("s_lshl_b32 s32, s30, 10")
    k(f"s_add_u32 s32, s32, {SILU}")
    k(f"buffer_store_dwordx4 {q4(C)}, v6, s[20:23], s32 offen")
    k(f"buffer_store_dwordx4 {q4(C+4)}, v6, s[20:23], s32 offen offset:16")
    k.label(LNS)
    k("s_waitcnt lgkmcnt(0)")
    k("s_barrier")
    k("s_cmp_lg_u32 s3, 0")
    k(f"s_cbranch_scc1 {LEND}")
    k("v_lshlrev_b32 v7, 2, v2")
    k("ds_read2st64_b32 v[8:9], v7 offset0:0 offset1:1")
    k("ds_read2st64_b32 v[10:11], v7 offset0:2 offset1:3")
    k("s_mul_i32 s34, s30, 24576")
    k("s_lshr_b32 s35, s31, 4")
    k("s_lshl_b32 s35, s35, 12")
    k("s_add_u32 s34, s34, s35")
    k("s_bfe_u32 s35, s31, 0x10003")
    k("s_lshl_b32 s35, s35, 9")
    k("s_add_u32 s34, s34, s35")
    k("s_bfe_u32 s35, s31, 0x20001")
    k("s_lshl_b32 s35, s35, 2")
    k("s_add_u32 s34, s34, s35")
    k("s_and_b32 s35, s31, 1")
    k("s_lshl_b32 s35, s35, 8")
    k("s_add_u32 s34, s34, s35")
    k("v_and_b32 v12, 3, v2")
    k("v_lshlrev_b32 v12, 10, v12")
    k("v_lshrrev_b32 v13, 2, v2")
    k("v_lshl_add_u32 v12, v13, 4, v12")
    k("s_waitcnt lgkmcnt(0)")
    k("v_add_f32 v8, v8, v9")
    k("v_add_f32 v10, v10, v11")
    k("v_add_f32 v8, v8, v10")
    k("buffer_store_dword v8, v12, s[20:23], s34 offen")
    fin()
    k("s_endpgm")
    k.label(LB)
    k(f"s_sub_u32 s29, s2, {K0_NA}")
    LFI = k.newlabel("filt")
    k(f"s_cmp_ge_u32 s29, {K0_NB}")
    k(f"s_cbranch_scc1 {LFI}")
    k("s_lshr_b32 s30, s3, 1")
    k("s_lshl_b32 s30, s30, 4")
    k("s_and_b32 s31, s3, 1")
    k("s_lshl_b32 s31, s31, 1")
    k("s_add_u32 s30, s30, s31")
    k("s_bfe_u32 s31, s29, 0x20004")
    k("s_lshl_b32 s31, s31, 2")
    k("s_add_u32 s30, s30, s31")
    k("s_lshl_b32 s30, s30, 6")
    k("s_lshr_b32 s31, s29, 6")
    k("s_lshl_b32 s31, s31, 4")
    k("s_add_u32 s30, s30, s31")
    k("s_and_b32 s31, s29, 15")
    k("s_add_u32 s30, s30, s31")
    k("s_lshl_b32 s30, s30, 11")
    k("v_and_b32 v3, 1, v2")
    k("v_lshlrev_b32 v3, 17, v3")
    k("v_bfe_u32 v4, v2, 1, 3")
    k("v_lshl_add_u32 v3, v4, 3, v3")
    k("v_lshrrev_b32 v4, 4, v2")
    k("v_lshl_add_u32 v3, v4, 6, v3")
    k("s_waitcnt lgkmcnt(0)")
    srd(k, 12, 24, S * D * 2)
    srd(k, 20, 8, WS_END)
    k.stamp(1)
    for j in range(8):
        k(f"buffer_load_dwordx2 v[{8+2*j}:{9+2*j}], v3, s[12:15], s30 offen offset:{256*j}")
    X = 24
    for j in range(8):
        k(f"s_waitcnt vmcnt({7-j})")
        k(f"v_lshlrev_b32 v{X+4*j}, 16, v{8+2*j}")
        k(f"v_and_b32 v{X+4*j+1}, 0xffff0000, v{8+2*j}")
        k(f"v_lshlrev_b32 v{X+4*j+2}, 16, v{9+2*j}")
        k(f"v_and_b32 v{X+4*j+3}, 0xffff0000, v{9+2*j}")
        if j == 0:
            k(f"v_pk_add_f32 v[56:57], v[{X}:{X+1}], v[{X+2}:{X+3}]")
            k(f"v_pk_mul_f32 v[58:59], v[{X}:{X+1}], v[{X}:{X+1}]")
            k(f"v_pk_mul_f32 v[60:61], v[{X+2}:{X+3}], v[{X+2}:{X+3}]")
        else:
            b = X + 4 * j
            k(f"v_pk_add_f32 v[56:57], v[56:57], v[{b}:{b+1}]")
            k(f"v_pk_fma_f32 v[58:59], v[{b}:{b+1}], v[{b}:{b+1}], v[58:59]")
            k(f"v_pk_add_f32 v[56:57], v[56:57], v[{b+2}:{b+3}]")
            k(f"v_pk_fma_f32 v[60:61], v[{b+2}:{b+3}], v[{b+2}:{b+3}], v[60:61]")
    k.stamp(2)
    k("v_pk_add_f32 v[58:59], v[58:59], v[60:61]")
    k("v_add_f32 v56, v56, v57")
    k("v_add_f32 v58, v58, v59")
    k("v_permlane32_swap_b32 v56, v58")
    k("v_add_f32 v56, v56, v58")
    k("v_mov_b32 v57, v56")
    k("v_permlane16_swap_b32 v57, v56")
    k("v_add_f32 v56, v56, v57")
    k("v_add_f32_dpp v56, v56, v56 quad_perm:[2,3,0,1] row_mask:0xf bank_mask:0xf")
    k("v_add_f32_dpp v56, v56, v56 row_ror:4 row_mask:0xf bank_mask:0xf")
    k("v_add_f32_dpp v56, v56, v56 row_ror:8 row_mask:0xf bank_mask:0xf")
    k("v_mov_b32 v57, v56")
    k("v_permlane32_swap_b32 v57, v56")
    ln_stats(k, 57, 56, 60, 58)
    for j in range(8):
        for h in range(2):
            b = X + 4 * j + 2 * h
            k(f"v_pk_fma_f32 v[{b}:{b+1}], v[{b}:{b+1}], v[60:61], v[60:61] op_sel:[0,0,1] op_sel_hi:[1,0,1]")
    k("s_lshl_b32 s31, s29, 2")
    k("s_add_u32 s31, s31, s3")
    k("s_lshl_b32 s31, s31, 12")
    k(f"s_add_u32 s31, s31, {XH}")
    k("v_lshlrev_b32 v3, 4, v2")
    for t in range(4):
        for jj in range(4):
            k(f"v_cvt_pk_bf16_f32 v{8+4*t+jj}, v{X+8*jj+t}, v{X+8*jj+4+t}")
        k(f"buffer_store_dwordx4 v[{8+4*t}:{11+4*t}], v3, s[20:23], s31 offen offset:{1024*t}")
    fin()
    k("s_endpgm")
    k.label(LFI)
    k(f"s_sub_u32 s50, s29, {K0_NB}")
    k("s_lshl_b32 s50, s50, 2")
    k("s_add_u32 s50, s50, s3")
    k("s_waitcnt lgkmcnt(0)")
    srd(k, 20, 8, WS_END)
    job_filter(k, 50)
    k("s_endpgm")
    k.label(LP)
    lab = k.newlabel("pc")
    k("s_getpc_b64 s[12:13]")
    k.label(lab)
    k(f"s_sub_u32 s12, s12, {lab}-k0_kernel")
    k("s_subb_u32 s13, s13, 0")
    k("s_mov_b32 s14, code_end-k0_kernel")
    k("s_mov_b32 s15, 0x20000")
    k("s_lshr_b32 s30, s2, 3")
    k("s_lshl_b32 s30, s30, 2")
    k("s_add_u32 s30, s30, s3")
    k(f"s_mul_i32 s30, s30, {PF_KB*1024}")
    k("v_lshlrev_b32 v3, 4, v2")
    for j in range(PF_KB):
        k(f"buffer_load_dwordx4 {q4(8+4*j)}, v3, s[12:15], s30 offen offset:{j*1024}")
    k("s_waitcnt lgkmcnt(0)")
    srd(k, 20, 8, WS_END)
    LF = k.newlabel("F")
    k("s_cmp_ge_u32 s2, 5")
    k(f"s_cbranch_scc1 {LF}")
    k(f"v_mov_b32 v24, 0")
    k("v_lshlrev_b32 v4, 7, v0")
    k("s_lshl_b32 s31, s2, 15")
    k(f"s_add_u32 s31, s31, {FLG}")
    k("buffer_store_dword v24, v4, s[20:23], s31 offen")
    k("s_endpgm")
    k.label(LF)
    k("s_sub_u32 s50, s2, 8")
    k("s_cmp_ge_u32 s50, 32")
    k(f"s_cbranch_scc1 {LEND}")
    k("s_cmp_lg_u32 s3, 0")
    k(f"s_cbranch_scc1 {LEND}")
    job_filter512(k, 50)
    k.label(LEND)
    k("s_endpgm")
    return k, dict(grid=K0_NWG, block=256, lds=1024)


def ln_stats(k, vsum, vsq, out, tmp):
    k(f"v_mul_f32 v{vsum}, {f32hex(1/1024)}, v{vsum}")
    k(f"v_mul_f32 v{tmp}, v{vsum}, v{vsum}")
    k(f"v_mul_f32 v{vsq}, {f32hex(1/1024)}, v{vsq}")
    k(f"v_sub_f32 v{vsq}, v{vsq}, v{tmp}")
    k(f"v_max_f32 v{vsq}, 0, v{vsq}")
    k(f"v_cvt_pk_bf16_f32 v{tmp}, v{vsum}, v{vsq}")
    k(f"v_and_b32 v{vsq}, 0xffff0000, v{tmp}")
    k(f"v_lshlrev_b32 v{vsum}, 16, v{tmp}")
    k(f"v_add_f32 v{vsq}, {f32hex(1e-5)}, v{vsq}")
    round_bf16(k, vsq, vsq)
    k(f"v_sqrt_f32 v{vsq}, v{vsq}")
    round_bf16(k, vsq, vsq)
    k(f"v_rcp_f32 v{out}, v{vsq}")
    k(f"v_mul_f32 v{out+1}, v{vsum}, v{out}")
    k(f"v_sub_f32 v{out+1}, 0, v{out+1}")
```

```python
import sys
sys.path.insert(0, 'dev')
from asmlib import *
from layout import *
import importlib

def build(kernels, path, tables=""):
    ref = open('adaLN_cond__spectral_gfnet__mixer_channel_mlp__prompt.s.ref').read()
    hdr = []
    for line in ref.splitlines():
        if line.startswith('; Override') : break
        hdr.append(line)
    hdr = "\n".join(hdr) + "\n"
    txt = '.amdgcn_target "amdgcn-amd-amdhsa--gfx950"\n'
    desc = ""
    for k, cfg in kernels:
        hdr += f"; @launch kernel={k.name} grid=({cfg['grid']},1,1) block=({cfg['block']},1,1) lds={cfg['lds']}\n"
        txt += kernel_text(k)
        nv, ns, na = max_regs(k)
        desc += descriptor(k.name, nv, max(ns, 16), agprs=na)
        print(k.name, 'vgpr', nv, 'sgpr', ns, 'agpr', na, 'nops', k.n_nops, 'instrs', sum(1 for x in k.items if x[0]=='i'))
    open(path, 'w').write(hdr + txt + tables + '.text\ncode_end:\n' + desc)

if __name__ == '__main__':
    import os
    Kernel.STAMPS = os.environ.get('STAMPS') == '1'
    Kernel.DBG = os.environ.get('DBG') == '1'
    import k0
    ks = [k0.gen_k0()]
    tables = ""
    for name in (('mega',) if os.environ.get('MEGA', '1') == '1' else ('k1', 'k2', 'tail')):
        try:
            m = importlib.import_module(name)
        except ModuleNotFoundError:
            break
        ks.append(getattr(m, 'gen_' + name)())
        if hasattr(m, 'tables'):
            tables += m.tables()
    out = sys.argv[1] if len(sys.argv) > 1 else 'adaLN_cond__spectral_gfnet__mixer_channel_mlp__prompt.s'
    build(ks, out, tables)
```

```python
import re
import struct


def v(i, n=1):
    return f"v{i}" if n == 1 else f"v[{i}:{i + n - 1}]"


def a(i, n=1):
    return f"a{i}" if n == 1 else f"a[{i}:{i + n - 1}]"


def s(i, n=1):
    return f"s{i}" if n == 1 else f"s[{i}:{i + n - 1}]"


def f32hex(x):
    return "0x%08x" % struct.unpack("<I", struct.pack("<f", x))[0]


def bf16bits(x):
    u = struct.unpack("<I", struct.pack("<f", x))[0]
    u = (u + 0x7FFF + ((u >> 16) & 1)) >> 16
    return u & 0xFFFF


_REG_RE = re.compile(r"\b([vas])(\d+)\b|\b([vas])\[(\d+):(\d+)\]|\b(vcc|exec|m0|scc)(_lo|_hi)?\b")

TRANS = ("v_exp_f32", "v_log_f32", "v_rcp_f32", "v_rsq_f32", "v_sqrt_f32", "v_sin_f32", "v_cos_f32",
         "v_rcp_iflag_f32")


def regs_of(tok):
    out = set()
    for m in _REG_RE.finditer(tok):
        if m.group(1):
            out.add((m.group(1), int(m.group(2))))
        elif m.group(3):
            for i in range(int(m.group(4)), int(m.group(5)) + 1):
                out.add((m.group(3), i))
        else:
            out.add((m.group(6), 0))
    return out


def split_ops(rest):
    ops, depth, cur = [], 0, ""
    for ch in rest:
        if ch in "[(":
            depth += 1
        if ch in "])":
            depth -= 1
        if ch == "," and depth == 0:
            ops.append(cur.strip())
            cur = ""
        else:
            cur += ch
    if cur.strip():
        ops.append(cur.strip())
    return ops


class Ins:
    __slots__ = ("text", "op", "cls", "rd", "wr", "srcc", "srcab", "passes", "dpp", "ws", "target", "store_data",
                 "lds_dma", "sreads")

    def __init__(self, text):
        self.text = text
        t = text.split(";")[0].strip()
        parts = t.split(None, 1)
        op = parts[0]
        rest = parts[1] if len(parts) > 1 else ""
        self.op = op
        ops = split_ops(rest)
        if ops:
            last = ops[-1].split()
            mods = " ".join(last[1:])
            ops[-1] = last[0] if last else ""
        else:
            mods = ""
        self.rd, self.wr = set(), set()
        self.srcc, self.srcab = set(), set()
        self.passes = 0
        self.dpp = False
        self.ws = 1
        self.target = None
        self.store_data = set()
        self.lds_dma = False
        base = op.replace("_e32", "").replace("_e64", "").replace("_dpp", "").replace("_sdwa", "")
        if op.startswith("v_mfma"):
            self.cls = "mfma"
            self.wr = regs_of(ops[0])
            self.srcab = regs_of(ops[1]) | regs_of(ops[2])
            self.srcc = regs_of(ops[3])
            self.rd = self.srcab | self.srcc
            if "32x32x16" in op or "32x32x8" in op:
                self.passes = 8
            elif "16x16x32" in op or "16x16x16" in op:
                self.passes = 4
            else:
                raise ValueError("unknown mfma " + op)
        elif op.startswith("v_"):
            self.cls = "valu"
            self.dpp = "_dpp" in op or "quad_perm" in mods or "row_" in mods
            if base.startswith("v_permlane") and "swap" in base:
                self.wr = regs_of(ops[0]) | regs_of(ops[1])
                self.rd = set(self.wr)
            elif base.startswith("v_cmp"):
                self.wr = regs_of(ops[0])
                for o in ops[1:]:
                    self.rd |= regs_of(o)
                if base.startswith("v_cmpx"):
                    self.wr.add(("exec", 0))
            elif base in ("v_add_co_u32", "v_sub_co_u32", "v_addc_co_u32", "v_subb_co_u32", "v_subrev_co_u32",
                          "v_mad_u64_u32", "v_div_scale_f32"):
                self.wr = regs_of(ops[0]) | regs_of(ops[1])
                for o in ops[2:]:
                    self.rd |= regs_of(o)
            else:
                self.wr = regs_of(ops[0])
                for o in ops[1:]:
                    self.rd |= regs_of(o)
                if base in ("v_fmac_f32", "v_dot2c_f32_bf16", "v_pk_fmac_f16", "v_writelane_b32") or self.dpp \
                        or "dst_unused:UNUSED_PRESERVE" in mods:
                    self.rd |= self.wr
                if base == "v_cndmask_b32" and len(ops) == 3:
                    self.rd.add(("vcc", 0))
        elif op.startswith("buffer_") or op.startswith("global_") or op.startswith("flat_"):
            self.cls = "vmem"
            allmods = mods + " " + (ops[-1] if ops else "")
            is_lds = bool(re.search(r"\blds\b", mods)) or "load_lds" in op
            self.lds_dma = is_lds
            if op in ("buffer_wbl2", "buffer_inv"):
                pass
            elif "load" in op and not is_lds:
                self.wr = regs_of(ops[0])
                for o in ops[1:]:
                    self.rd |= regs_of(o)
                if "d16" in op:
                    self.rd |= self.wr
            elif is_lds:
                for o in ops:
                    self.rd |= regs_of(o)
                self.rd.add(("m0", 0))
            elif "store" in op:
                for o in ops:
                    self.rd |= regs_of(o)
                data = ops[0] if op.startswith("buffer_") else ops[1]
                if "x3" in op or "x4" in op:
                    self.store_data = regs_of(data)
            elif "atomic" in op:
                for o in ops:
                    self.rd |= regs_of(o)
                if re.search(r"\bsc0\b", mods):
                    self.wr = regs_of(ops[0])
            else:
                raise ValueError("unknown vmem " + text)
        elif op.startswith("ds_"):
            self.cls = "ds"
            if "read" in op or "bpermute" in op or "permute" in op or "swizzle" in op or "_rtn" in op:
                self.wr = regs_of(ops[0])
                for o in ops[1:]:
                    self.rd |= regs_of(o)
            else:
                for o in ops:
                    self.rd |= regs_of(o)
        elif op == "s_nop":
            self.cls = "nop"
            self.ws = int(ops[0], 0) + 1
        elif op.startswith("s_cbranch") or op == "s_branch":
            self.cls = "branch"
            self.target = ops[0]
        elif op in ("s_waitcnt", "s_barrier", "s_endpgm", "s_setprio", "s_sleep"):
            self.cls = "misc"
        elif op.startswith("s_load") or op.startswith("s_buffer_load") or op in ("s_memtime", "s_memrealtime") \
                or op.startswith("s_atomic"):
            self.cls = "smem"
            self.wr = regs_of(ops[0])
            for o in ops[1:]:
                self.rd |= regs_of(o)
        elif op.startswith("s_"):
            self.cls = "salu"
            if op.startswith("s_cmp") or op.startswith("s_bitcmp"):
                for o in ops:
                    self.rd |= regs_of(o)
            else:
                self.wr = regs_of(ops[0])
                for o in ops[1:]:
                    self.rd |= regs_of(o)
                if "saveexec" in op:
                    self.wr.add(("exec", 0))
        else:
            raise ValueError("unknown instruction " + text)
        self.sreads = {r for r in self.rd if r[0] in ("s", "vcc")}


def _vec(rs):
    return {r for r in rs if r[0] in ("v", "a")}


def _sc(rs):
    return {r for r in rs if r[0] in ("s", "vcc")}


def need_between(p, c):
    n = 0
    base_c = c.op.replace("_e32", "").replace("_e64", "")
    if p.cls == "valu":
        if c.cls == "mfma" and p.op.startswith("v_pk_") and ("op_sel" in p.text or "neg_" in p.text):
            n = max(n, 2)
        wv = _vec(p.wr)
        ws_ = _sc(p.wr)
        if wv:
            if c.cls == "mfma" and wv & c.rd:
                n = max(n, 2)
            if c.cls == "valu":
                if c.dpp and wv & c.rd:
                    n = max(n, 2)
                if base_c.startswith("v_permlane") and wv & c.rd:
                    n = max(n, 2)
                if base_c in ("v_readlane_b32", "v_readfirstlane_b32") and wv & c.rd:
                    n = max(n, 1)
                pb = p.op.replace("_e32", "").replace("_e64", "")
                if pb in TRANS and wv & c.rd:
                    n = max(n, 1)
                if ("dst_sel:WORD" in p.text or "dst_sel:BYTE" in p.text) and wv & (c.rd | c.wr):
                    n = max(n, 1)
                if pb.startswith("v_dot2") and wv & (c.rd | c.wr):
                    cb = base_c
                    if cb != pb:
                        n = max(n, 3)
                    else:
                        ops = split_ops(c.text.split(";")[0].split(None, 1)[1])
                        ab = set()
                        for o in ops[1:3]:
                            ab |= regs_of(o)
                        if wv & ab:
                            n = max(n, 3)
            if c.cls in ("vmem", "ds") and p.op.startswith("v_dot2") and wv & c.rd:
                n = max(n, 3)
        if ws_:
            if c.cls == "valu" and ws_ & c.rd:
                n = max(n, 2)
                if base_c in ("v_readlane_b32", "v_writelane_b32"):
                    n = max(n, 4)
            if c.cls == "mfma" and ws_ & c.rd:
                n = max(n, 2)
            if c.cls == "vmem" and ws_ & c.rd:
                n = max(n, 5)
            if c.cls in ("salu", "smem") and ws_ & c.rd:
                n = max(n, 1)
            if c.cls == "branch" and ("vcc", 0) in ws_ and "vcc" in c.op:
                n = max(n, 5)
        if ("exec", 0) in p.wr:
            if c.cls in ("valu", "mfma"):
                n = max(n, 5)
    elif p.cls == "mfma":
        big = {4: 8, 8: 12}[p.passes]
        ovl = {4: 6, 8: 10}[p.passes]
        war = {4: 3, 8: 7}[p.passes]
        if c.cls == "mfma":
            if p.wr & c.srcab:
                n = max(n, big)
            if p.wr & c.srcc:
                if not (p.wr == c.srcc and p.passes == c.passes):
                    n = max(n, ovl)
            elif p.wr & c.wr:
                n = max(n, ovl)
        elif c.cls in ("valu", "vmem", "ds"):
            if p.wr & (c.rd | c.wr):
                n = max(n, big)
            if c.cls == "valu" and p.srcc & c.wr:
                n = max(n, war)
            if c.cls in ("vmem", "ds") and p.srcc & c.wr:
                n = max(n, war)
    elif p.cls == "vmem":
        if p.store_data and (p.store_data & c.wr):
            n = max(n, 2 if c.cls == "valu" else 1)
    elif p.cls == "salu":
        if ("m0", 0) in p.wr and (c.lds_dma or "addtid" in c.op or c.op.startswith("s_movrel")):
            n = max(n, 1)
    return n


MAXWIN = 14


class Kernel:
    def __init__(self, name):
        self.name = name
        self.items = []
        self._uid = 0

    def __call__(self, text):
        for line in text.split("\n"):
            line = line.strip()
            if not line:
                continue
            if line.startswith(";"):
                self.items.append(("r", "    " + line))
            else:
                self.items.append(("i", Ins(line)))

    def label(self, name):
        self.items.append(("l", name))

    def newlabel(self, stem="L"):
        self._uid += 1
        return f"{self.name}_{stem}{self._uid}"

    STAMPS = False
    STAMP_BASE = 0x4000000

    def stamp(self, i, cyc=False):
        import os
        if os.environ.get('PINAT') and int(os.environ['PINAT']) == i and getattr(self, 'pin_on', False):
            self("s_memrealtime s[90:91]")
            self("s_waitcnt lgkmcnt(0)")
        if not Kernel.STAMPS:
            return
        self(f"{'s_memtime' if cyc else 's_memrealtime'} s[{70+2*i}:{71+2*i}]")
        self("s_waitcnt lgkmcnt(0)")
        self.nstamps = max(getattr(self, "nstamps", 0), i + 1)

    def stamp_flush(self, kidx, srd=20):
        if not Kernel.STAMPS:
            return
        n = self.nstamps
        if Kernel.DBG:
            sel = {0: (0, 200, [0, 4], 0), 1: (1, 5, [0, 5, 8], 2), 2: (2, 5, [0, 4, 8], 5), 3: (3, 5, [0, 2, 5, 6, 8, 9, 13], 8)}
            if kidx not in sel:
                return
            launch, wg, idx, slot = sel[kidx]
            L = self.newlabel("dbg")
            self(f"s_cmp_lg_u32 s2, {wg}")
            self(f"s_cbranch_scc1 {L}")
            self(f"s_cmp_lg_u32 s3, 0")
            self(f"s_cbranch_scc1 {L}")
            if launch < 3:
                self("s_mov_b64 exec, 1")
                self("s_mov_b32 s98, 0x58000")
                for j, i in enumerate(idx):
                    self(f"v_mov_b32 v1, s{70+2*i}")
                    self(f"buffer_store_dword v1, off, s[20:23], s98 offset:{4*(slot+j)}")
            else:
                self("s_load_dwordx2 s[24:25], s[0:1], 88")
                self("s_waitcnt lgkmcnt(0)")
                self("s_mov_b32 s26, 256")
                self("s_mov_b32 s27, 0x20000")
                self("s_mov_b64 exec, 1")
                self("s_mov_b32 s98, 0x58000")
                self("buffer_load_dwordx4 v[8:11], off, s[20:23], s98")
                self("buffer_load_dwordx4 v[12:15], off, s[20:23], s98 offset:16")
                self("s_waitcnt vmcnt(0)")
                self("buffer_store_dwordx4 v[8:11], off, s[24:27], 0")
                self("buffer_store_dwordx4 v[12:15], off, s[24:27], 0 offset:16")
                for j, i in enumerate(idx):
                    self(f"v_mov_b32 v1, s{70+2*i}")
                    self(f"buffer_store_dword v1, off, s[24:27], 0 offset:{4*(slot+j)}")
            self.label(L)
            return
        self("s_mov_b64 exec, 1")
        self(f"s_lshl_b32 s98, s2, 3")
        self(f"s_add_u32 s98, s98, s3")
        self(f"s_lshl_b32 s98, s98, 6")
        self(f"s_add_u32 s98, s98, {Kernel.STAMP_BASE + kidx * 2048 * 8 * 64}")
        self(f"s_mov_b32 s{srd+2}, 0x10000000")
        self("v_mov_b32 v0, 0")
        for i in range(n):
            self(f"v_mov_b32 v1, s{70+2*i}")
            self(f"buffer_store_dword v1, v0, s[{srd}:{srd+3}], s98 offen offset:{4*i}")

    DBG = False
    def dbgstamp(self, launch, slot, wg=0):
        if not Kernel.DBG:
            return
        L = self.newlabel("dbg")
        self(f"s_cmp_lg_u32 s2, {wg}")
        self(f"s_cbranch_scc1 {L}")
        self(f"s_cmp_lg_u32 s3, 0")
        self(f"s_cbranch_scc1 {L}")
        self("s_load_dwordx2 s[92:93], s[0:1], 88")
        self("s_memrealtime s[90:91]")
        self("s_waitcnt lgkmcnt(0)")
        self(f"s_sub_u32 s92, s92, {launch*512}")
        self("s_subb_u32 s93, s93, 0")
        self("s_mov_b32 s94, 256")
        self("s_mov_b32 s95, 0x20000")
        self("s_mov_b64 s[96:97], exec")
        self("s_mov_b64 exec, 1")
        self("v_mov_b32 v1, s90")
        self(f"buffer_store_dword v1, off, s[92:95], 0 offset:{4*slot}")
        self("s_mov_b64 exec, s[96:97]")
        self.label(L)

    def raw(self, text):
        self.items.append(("r", text))

    def finish(self):
        items = self.items
        i = 0
        n_ins = 0
        while i < len(items):
            kind, it = items[i]
            if kind != "i" or it.cls in ("nop", "misc"):
                i += 1
                continue
            need = self._need(items, i)
            if need > 0:
                while need > 0:
                    k = min(need, 16)
                    items.insert(i, ("i", Ins(f"s_nop {k - 1}")))
                    i += 1
                    need -= k
                    n_ins += 1
            i += 1
        out = []
        for kind, it in items:
            if kind == "i":
                out.append("    " + it.text)
            elif kind == "l":
                out.append(it + ":")
            else:
                out.append(it)
        self.n_nops = n_ins
        return "\n".join(out) + "\n"

    def _need(self, items, idx):
        c = items[idx][1]
        if not hasattr(self, "_br") or self._brlen != len(items):
            self._br = {}
            for j, (k, it) in enumerate(items):
                if k == "i" and it.cls == "branch":
                    self._br.setdefault(it.target, []).append(j)
            self._brlen = len(items)
        best = 0
        stack = [(idx - 1, 0)]
        seen = set()
        while stack:
            j, dist = stack.pop()
            while j >= 0 and dist < MAXWIN:
                if (j, dist) in seen:
                    break
                seen.add((j, dist))
                k, it = items[j]
                if k == "l":
                    for b in self._br.get(it, []):
                        stack.append((b, dist))
                    j -= 1
                    continue
                if k == "r":
                    j -= 1
                    continue
                if it.op in ("s_branch", "s_endpgm") and j != idx - 1 + 1 and not self._arrived_by_branch(j, stack):
                    pass
                n = need_between(it, c)
                if n > dist:
                    best = max(best, n - dist)
                dist += it.ws
                pj = j - 1
                while pj >= 0 and items[pj][0] == "r":
                    pj -= 1
                if pj >= 0 and items[pj][0] == "i" and items[pj][1].op in ("s_branch", "s_endpgm"):
                    break
                j -= 1
        return best

    def _arrived_by_branch(self, j, stack):
        return False


def descriptor(name, vgprs, sgprs=102, accum=None, agprs=0, wg_y=False):
    accum = accum if accum is not None else ((vgprs + 3) // 4) * 4
    accum = max(4, min(256, accum))
    nfv = accum + agprs if agprs else vgprs
    t = f""".section .rodata,"a"
.p2align 6
.amdhsa_kernel {name}
  .amdhsa_next_free_vgpr {nfv}
  .amdhsa_next_free_sgpr {sgprs}
  .amdhsa_accum_offset {accum}
  .amdhsa_group_segment_fixed_size 0
  .amdhsa_kernarg_size 104
  .amdhsa_user_sgpr_count 2
  .amdhsa_user_sgpr_kernarg_segment_ptr 1
  .amdhsa_system_sgpr_workgroup_id_x 1
"""
    if wg_y:
        t += "  .amdhsa_system_sgpr_workgroup_id_y 1\n"
    t += "  .amdhsa_float_denorm_mode_32 3\n"
    t += ".end_amdhsa_kernel\n"
    return t


def kernel_text(k):
    body = k.finish()
    return f""".text
.globl {k.name}
.p2align 8
.type {k.name},@function
{k.name}:
{body}"""


def max_regs(k):
    mv = ms = ma = -1
    for kind, it in k.items:
        if kind != "i":
            continue
        for r in it.rd | it.wr:
            if r[0] == "v":
                mv = max(mv, r[1])
            elif r[0] == "s":
                ms = max(ms, r[1])
            elif r[0] == "a":
                ma = max(ma, r[1])
    return mv + 1, ms + 1, ma + 1
```
